```python
import torch

def _softmax(x, axis=-1):
    return torch.softmax(x, dim=axis)
def _gelu(x):
    return torch.nn.functional.gelu(x, approximate="tanh")
def _silu(x):
    return torch.nn.functional.silu(x)
def _sigmoid(x):
    return torch.sigmoid(x)
def _layernorm(x, axis=-1, eps=1e-5):
    m = x.mean(dim=axis, keepdim=True)
    v = x.var(dim=axis, keepdim=True, unbiased=False)
    return (x - m) / torch.sqrt(v + eps)
def _scatter_add(tgt, idx, src, axis=0):
    return tgt.clone().index_add_(axis, idx, src)
def _segment_sum(src, seg, n):
    out = torch.zeros((n,) + src.shape[1:], dtype=src.dtype)
    return out.index_add_(0, seg, src)
def _pad(x, pw):
    flat = tuple(v for pair in reversed(pw) for v in pair)
    return torch.nn.functional.pad(x, flat)

kernel_name = 'standalone__swiglu_ffn__prompt'

def setup_inputs():

    _w = (lambda a: (lambda t: t.to(torch.bfloat16) if t.is_floating_point() else t)(torch.as_tensor(a)))
    B, S, D, F = 1, 2048, 1024, 3584
    return {
        "x": _w((lambda *s: torch.randn(*s, dtype=torch.bfloat16) * 0.05)(B, S, D)),
        "w_gate": _w((lambda *s: torch.randn(*s, dtype=torch.bfloat16) * 0.05)(D, F)),
        "w_up": _w((lambda *s: torch.randn(*s, dtype=torch.bfloat16) * 0.05)(D, F)),
        "w_down": _w((lambda *s: torch.randn(*s, dtype=torch.bfloat16) * 0.05)(F, D)),
    }

def reference(x, w_gate, w_up, w_down):
    g = _silu(x @ w_gate)
    u = x @ w_up
    return (g * u) @ w_down
```

```python
import sys
from collections import defaultdict

KNAME = "standalone__swiglu_ffn__prompt_kernel"
HOFF = 0x100000
FOFF = 0x0
SOFF = 0x80000


class B:
    def __init__(self):
        self.out = []
        self.vm_n = 0
        self.vm_tag = {}
        self.vm_done = 0
        self.lg_n = 0
        self.lg_tag = {}
        self.lg_done = 0

    def e(self, s):
        self.out.append(s)

    def vm(self, s, tag=None):
        self.e(s)
        self.vm_n += 1
        if tag is not None:
            self.vm_tag[tag] = self.vm_n

    def lg(self, s, tag=None):
        self.e(s)
        self.lg_n += 1
        if tag is not None:
            self.lg_tag[tag] = self.lg_n

    def wait(self, vm=(), lg=()):
        parts = []
        need = max([self.vm_tag[t] for t in vm], default=0)
        if need > self.vm_done:
            n = self.vm_n - need
            parts.append(f"vmcnt({min(n, 63)})")
            self.vm_done = need if n <= 63 else self.vm_n - 63
        need = max([self.lg_tag[t] for t in lg], default=0)
        if need > self.lg_done:
            n = self.lg_n - need
            parts.append(f"lgkmcnt({min(n, 15)})")
            self.lg_done = need if n <= 15 else self.lg_n - 15
        if parts:
            self.e("s_waitcnt " + " ".join(parts))

    def wait_all(self, vm=False, lg=False):
        parts = []
        if vm and self.vm_done < self.vm_n:
            parts.append("vmcnt(0)")
            self.vm_done = self.vm_n
        if lg and self.lg_done < self.lg_n:
            parts.append("lgkmcnt(0)")
            self.lg_done = self.lg_n
        if parts:
            self.e("s_waitcnt " + " ".join(parts))


def R(p, a, n=4):
    return f"{p}[{a}:{a + n - 1}]"


sX, sW, sD, sHS, sHL, sO, sF, sG = 8, 12, 16, 20, 24, 28, 32, 36
sWV, sT0, sT1, sT2, sT3 = 40, 41, 42, 43, 44
sXQ = 48
sM0X, sM0W, sM0D = 56, 57, 58
sHA, sHB, sHLA, sHLB = 59, 60, 61, 62
sFP, sFC, sCP, sCC = 63, 64, 65, 66
sNL2E = 67
sSPIN = 68
sA, sB_ = 69, 70
sST = 72
vXD, vXR, vWD, vWR, vDD, vDR, vL16, vHL, vFP, vFV, vTMP, vWR2, vOUT = 1, 3, 5, 12, 13, 14, 18, 19, 20, 21, 22, 30, 31
vDR1, vDR2 = 5, 8
ACC = 32
aXF, aWF, aDF = 0, 64, 88
RW = 6
RH = 24
LDS_X = 0


def acc1(b, gu, jm):
    return ACC + 32 * b + 16 * gu + 4 * jm


def acc2(jl, nb):
    return 128 + 16 * jl + 4 * nb


def gen(nsig=3, stamps=False, gap=7, codepf=True, tail_dma_gap=3, flagpf=40, **O):
    b = B()
    e = b.e
    nst = [0]

    def stamp():
        if stamps:
            i = sST + 2 * nst[0]
            nst[0] += 1
            b.wait_all(lg=True)
            e(f"s_memtime s[{i}:{i + 1}]")
            e("s_waitcnt lgkmcnt(0)")

    SIG = [65536, 131072, 94208]
    if nsig == 3:
        sig = lambda s: SIG[s % 3]
    else:
        sig = lambda s: SIG[2] if s == 15 else SIG[s & 1]

    if stamps:
        e(f"s_memrealtime s[100:101]")
    e("s_load_dwordx8 s[8:15], s[0:1], 0")
    e("s_load_dwordx4 s[4:7], s[0:1], 32")
    e("s_load_dwordx2 s[32:33], s[0:1], 48")
    e("s_cmp_ge_u32 s2, 256")
    e("s_cbranch_scc1 L_end")
    stamp()
    e("v_lshrrev_b32 v2, 6, v0")
    e("v_and_b32 v0, 63, v0")
    e(f"v_readfirstlane_b32 s{sWV}, v2")
    e("s_and_b32 s41, s2, 1")
    e("s_bfe_u32 s42, s2, 0x20001")
    e("s_bfe_u32 s43, s2, 0x20003")
    e("s_lshr_b32 s44, s2, 5")
    e("s_lshl2_add_u32 s45, s41, s43")
    e("s_lshl3_add_u32 s46, s42, s44")
    e("s_lshl2_add_u32 s47, s42, s43")
    e("s_lshl3_add_u32 s3, s41, s44")
    sMT, sJ, sMB, sNB = 45, 46, 47, 3
    e(f"s_mov_b32 s{sA}, {(2**32 + 13) // 14}")
    for q in range(7):
        v = vWD + q
        e(f"v_add_u32 v22, {64 * q}, v0")
        e(f"v_mul_hi_u32 v23, v22, s{sA}")
        e(f"v_mul_u32_u24 v24, 14, v23")
        e(f"v_sub_u32 v22, v22, v24")
        e(f"v_and_b32 v24, 3, v23")
        e(f"v_and_b32 v23, 28, v23")
        e(f"v_lshl_add_u32 v23, v23, 1, v24")
        e(f"v_mul_u32_u24 v23, 7168, v23")
        e(f"v_lshl_add_u32 v{v}, v22, 4, v23")
        if q & 3:
            e(f"v_subrev_u32 v{v}, {1024 * (q & 3)}, v{v}")
    e("v_lshrrev_b32 v22, 3, v0")
    e("v_lshrrev_b32 v23, 4, v0")
    e("v_and_b32 v24, 7, v0")
    e("v_xor_b32 v25, v24, v23")
    e("v_lshlrev_b32 v22, 11, v22")
    e(f"v_lshl_add_u32 v{vXD}, v25, 4, v22")
    e(f"v_xor_b32 v{vXD + 1}, 64, v{vXD}")
    e("v_lshlrev_b32 v25, 1, v23")
    e("v_xor_b32 v25, v24, v25")
    e(f"v_lshl_add_u32 v{vDD}, v25, 4, v22")
    e("s_waitcnt lgkmcnt(0)")
    e(f"s_mov_b32 s{sD}, s14")
    e(f"s_mov_b32 s{sD + 1}, s15")
    e(f"s_bitcmp1_b32 s{sWV}, 0")
    e(f"s_cselect_b32 s{sW}, s12, s10")
    e(f"s_cselect_b32 s{sW + 1}, s13, s11")
    e(f"s_lshr_b32 s{sA}, s{sWV}, 1")
    e(f"s_mul_i32 s{sA}, s{sA}, {4 * 7168}")
    e(f"s_mul_i32 s{sB_}, s{sJ}, 224")
    e(f"s_add_u32 s{sA}, s{sA}, s{sB_}")
    e(f"s_add_u32 s{sW}, s{sW}, s{sA}")
    e(f"s_addc_u32 s{sW + 1}, s{sW + 1}, 0")
    e(f"s_mov_b32 s{sW + 2}, {60 * 7168}")
    e(f"s_mov_b32 s{sW + 3}, 0x20000")
    e(f"s_lshl2_add_u32 s{sA}, s{sMT}, s{sWV}")
    e(f"s_lshl_b32 s{sA}, s{sA}, 17")
    e(f"s_add_u32 s{sX}, s{sX}, s{sA}")
    e(f"s_addc_u32 s{sX + 1}, s{sX + 1}, 0")
    e(f"s_mov_b32 s{sX + 2}, {63 * 2048 + 128}")
    e(f"s_mov_b32 s{sX + 3}, 0x20000")
    for q in range(8):
        e(f"s_mov_b32 s{sXQ + q}, {q * 16384 - (q & 3) * 1024}")
    e(f"s_lshl_b32 s{sM0X}, s{sWV}, 13")
    e(f"s_mul_i32 s{sM0W}, s{sWV}, 7168")
    e(f"s_mov_b32 s{sF + 2}, 8192")
    e(f"s_mov_b32 s{sF + 3}, 0x20000")
    e(f"s_lshr_b32 s{sA}, s{sWV}, 1")
    e(f"s_lshl1_add_u32 s{sA}, s{sMT}, s{sA}")
    e(f"s_lshl2_add_u32 s{sB_}, s{sA}, s42")
    e(f"s_lshl_b32 s{sFP}, s{sB_}, 7")
    e(f"s_and_b32 s{sHA}, s{sWV}, 1")
    e(f"s_lshl1_add_u32 s{sHB}, s44, s{sHA}")
    e(f"s_lshl2_add_u32 s{sFP}, s{sHB}, s{sFP}")
    e("s_cmp_lg_u32 s2, 0")
    e("s_cbranch_scc1 L_noclear")
    for x in range(4):
        e(f"v_mov_b32 v{24 + x}, 0")
    e("v_lshlrev_b32 v22, 4, v0")
    e(f"s_lshl_b32 s{sA}, s{sWV}, 11")
    e(f"buffer_store_dwordx4 v[24:27], v22, {R('s', sF)}, s{sA} offen sc1")
    e(f"buffer_store_dwordx4 v[24:27], v22, {R('s', sF)}, s{sA} offen offset:1024 sc1")
    e("L_noclear:")

    m0_state = [None]
    wbase, xbase = [0], [0]

    def set_m0(sreg, off):
        if m0_state[0] != (sreg, off):
            m0_state[0] = (sreg, off)
            e(f"s_add_u32 m0, s{sreg}, {off}" if off else f"s_mov_b32 m0, s{sreg}")
            return True
        return False

    def pre_w(s, q):
        ch = set_m0(sM0W, sig(s) + (q >> 2) * 4096)
        if wbase[0] != s:
            assert wbase[0] + 1 == s
            wbase[0] = s
            e(f"s_add_u32 s{sW}, s{sW}, {0 if O.get('samew') else 64 * 7168}")
            e(f"s_addc_u32 s{sW + 1}, s{sW + 1}, 0")
            ch = False
        return ch

    def dma_w(s, q):
        if pre_w(s, q):
            e("s_nop 0")
        if O.get("now") and s >= 2:
            b.vm_tag["W", s, q] = 0
            return
        b.vm(f"buffer_load_dwordx4 v{vWD + q}, {R('s', sW)}, 0 offen offset:{(q & 3) * 1024} {O.get('wfl', '')} lds", ("W", s, q))

    def pre_x(s, q):
        ch = set_m0(sM0X, LDS_X + (s & 1) * 32768 + (q >> 2) * 4096)
        if xbase[0] != s:
            assert xbase[0] + 1 == s
            xbase[0] = s
            e(f"s_add_u32 s{sX}, s{sX}, {0 if O.get('samex') else 128}")
            e(f"s_addc_u32 s{sX + 1}, s{sX + 1}, 0")
            ch = False
        return ch

    def dma_x(s, q):
        if pre_x(s, q):
            e("s_nop 0")
        if O.get("nox") and s >= 2:
            b.vm_tag["X", s, q] = 0
            return
        b.vm(f"buffer_load_dwordx4 v{vXD + (q & 1)}, {R('s', sX)}, s{sXQ + q} offen offset:{(q & 3) * 1024} {O.get('xfl', '')} lds", ("X", s, q))

    for q in range(4):
        dma_w(0, q)
    for q in range(8):
        dma_x(0, q)
    for q in range(4, 7):
        dma_w(0, q)
    for q in range(4):
        dma_w(1, q)
    for q in range(8):
        dma_x(1, q)
    for q in range(4, 7):
        dma_w(1, q)
    if codepf:
        e("s_getpc_b64 s[70:71]")
        e("L_pc:")
        e("s_lshr_b32 s69, s2, 3")
        e(f"s_lshl2_add_u32 s69, s69, s{sWV}")
        e("s_and_b32 s69, s69, 7")
        e("s_lshl_b32 s69, s69, 13")
        e("v_lshl_add_u32 v22, v0, 7, s69")
        e("v_min_u32 v22, L_end-L_pc, v22")
        b.vm(f"global_load_dword v{vOUT}, v22, s[70:71]")

    e("v_and_b32 v22, 15, v0")
    e("v_lshrrev_b32 v23, 4, v0")
    e("v_lshrrev_b32 v24, 1, v22")
    e("v_xor_b32 v24, v24, v23")
    e("v_lshlrev_b32 v24, 4, v24")
    e("v_lshl_add_u32 v24, v22, 7, v24")
    e(f"v_add_u32 v{vXR}, s{sM0X}, v24")
    e(f"v_xor_b32 v{vXR + 1}, 64, v{vXR}")
    e(f"v_lshlrev_b32 v{vFP}, 2, v22")
    e("v_lshrrev_b32 v24, 2, v0")
    e("v_and_b32 v25, 3, v0")
    e("v_mul_u32_u24 v26, 224, v24")
    e("v_lshl_add_u32 v26, v25, 3, v26")
    e(f"v_add_u32 v{vWR}, 65536, v26")
    e(f"v_add_u32 v{vWR2}, 131072, v26")
    e("v_lshlrev_b32 v26, 7, v24")
    e("v_lshl_add_u32 v26, v25, 3, v26")
    e(f"v_add_u32 v26, s{sM0X}, v26")
    e("v_bfe_u32 v27, v0, 3, 2")
    e(f"v_lshl_add_u32 v{vDR}, v27, 5, v26")
    for nb in range(1, 4):
        e(f"v_xor_b32 v{vDR + nb}, {32 * nb}, v{vDR}")
    e(f"v_lshlrev_b32 v{vL16}, 4, v0")
    e("v_lshrrev_b32 v24, 5, v0")
    e("v_and_b32 v25, 31, v0")
    e("v_lshlrev_b32 v25, 4, v25")
    e(f"v_lshl_add_u32 v{vHL}, v24, 10, v25")
    e(f"s_mul_i32 s{sA}, s{sWV}, {896 * 2048}")
    e(f"s_lshl_b32 s{sB_}, s{sNB}, 7")
    e(f"s_add_u32 s{sA}, s{sA}, s{sB_}")
    e(f"s_add_u32 s{sD}, s{sD}, s{sA}")
    e(f"s_addc_u32 s{sD + 1}, s{sD + 1}, 0")
    e(f"s_mov_b32 s{sD + 2}, {895 * 2048 + 128}")
    e(f"s_mov_b32 s{sD + 3}, 0x20000")
    e(f"s_lshr_b32 s{sA}, s{sFP}, 7")
    e(f"s_mul_i32 s{sA}, s{sA}, {28 * 8192}")
    e(f"s_add_u32 s{sA}, s{sA}, {HOFF}")
    e(f"s_add_u32 s{sHS}, s{sF}, s{sA}")
    e(f"s_addc_u32 s{sHS + 1}, s{sF + 1}, 0")
    e(f"s_mov_b32 s{sHS + 2}, {28 * 8192}")
    e(f"s_mov_b32 s{sHS + 3}, 0x20000")
    e(f"s_lshl2_add_u32 s{sA}, s{sMB}, s{sWV}")
    e(f"s_lshl_b32 s{sFC}, s{sA}, 7")
    e(f"s_mul_i32 s{sA}, s{sA}, {28 * 8192}")
    e(f"s_add_u32 s{sA}, s{sA}, {HOFF}")
    e(f"s_add_u32 s{sHL}, s{sF}, s{sA}")
    e(f"s_addc_u32 s{sHL + 1}, s{sF + 1}, 0")
    e(f"s_mov_b32 s{sHL + 2}, {28 * 8192}")
    e(f"s_mov_b32 s{sHL + 3}, 0x20000")
    e(f"s_lshl_b32 s{sA}, s{sHA}, 1")
    e(f"s_sub_u32 s{sA}, s{sA}, s42")
    e(f"s_add_u32 s{sB_}, s{sA}, 1")
    e(f"s_and_b32 s{sA}, s{sA}, 3")
    e(f"s_and_b32 s{sB_}, s{sB_}, 3")
    e(f"s_lshl_b32 s{sA}, s{sA}, 11")
    e(f"s_lshl_b32 s{sB_}, s{sB_}, 11")
    e(f"s_add_u32 s{sHA}, s44, 4")
    e(f"s_lshl_b32 s{sHA}, s{sHA}, 13")
    e(f"s_add_u32 s{sHB}, s{sHA}, s{sB_}")
    e(f"s_add_u32 s{sHA}, s{sHA}, s{sA}")
    e(f"s_lshr_b32 s{sHLA}, s44, 1")
    e(f"s_lshl_b32 s{sHLA}, s{sHLA}, 13")
    e(f"s_and_b32 s{sHLB}, s44, 1")
    e(f"s_lshl_b32 s{sHLB}, s{sHLB}, 9")
    e(f"s_add_u32 s{sHLA}, s{sHLA}, s{sHLB}")
    e(f"s_add_u32 s{sHLB}, s{sHLA}, s{sB_}")
    e(f"s_add_u32 s{sHLA}, s{sHLA}, s{sA}")
    e(f"s_lshl2_add_u32 s{sA}, s{sMB}, s{sWV}")
    e(f"s_lshl_b32 s{sA}, s{sA}, 16")
    e(f"s_lshl_b32 s{sB_}, s{sNB}, 7")
    e(f"s_add_u32 s{sA}, s{sA}, s{sB_}")
    e(f"s_add_u32 s{sO}, s4, s{sA}")
    e(f"s_addc_u32 s{sO + 1}, s5, 0")
    e(f"s_mov_b32 s{sO + 2}, {31 * 2048 + 128}")
    e(f"s_mov_b32 s{sO + 3}, 0x20000")
    e(f"s_mov_b32 s{sG}, s6")
    e(f"s_mov_b32 s{sG + 1}, s7")
    e(f"s_mov_b32 s{sG + 2}, 256")
    e(f"s_mov_b32 s{sG + 3}, 0x20000")
    e(f"s_or_b32 s{sCP}, s2, s{sWV}")
    e(f"s_mov_b32 s{sCC}, 0")
    e(f"s_mov_b32 s{sNL2E}, 0xbfb8aa3b")

    side = defaultdict(list)
    mf = []
    NM = 28 * 56
    NT = NM + 224
    xset = lambda t: {29: 2, 30: 3, 31: 1}.get(t, t & 1)

    def wfrag_reg(F):
        return aWF + 4 * (F % RW)

    def rd_w(F, t, i, half):
        s, p, gu, blk = t >> 1, t & 1, i & 1, i >> 1
        off = sig(s) + (gu + 2 * half) * 7168 + p * 3584 + blk * 32
        v, off = (vWR, off - 65536) if off < 131072 else (vWR2, off - 131072)
        r = wfrag_reg(F) + 2 * half
        return lambda: b.lg(f"ds_read_b64_tr_b16 {R('a', r, 2)}, v{v} offset:{off}", ("wf", F))

    def rd_x(t, jm):
        s, p = t >> 1, t & 1

        def f():
            b.wait(vm=[("X", s, 2 * jm), ("X", s, 2 * jm + 1)])
            b.lg(f"ds_read_b128 {R('a', aXF + 16 * xset(t) + 4 * jm)}, v{vXR + p} offset:{LDS_X + (s & 1) * 32768 + jm * 2048}", ("xf", t, jm))
        return f

    P = [-12, -9, -6, -3, 0, 3, 6, 9, 12, 16, 20, 24, 28, 32]
    frs = [(t, i) for t in range(28) for i in range(14)]
    frs += [(28 + tt, 2 * blk + gu) for blk in range(7) for tt in range(4) for gu in range(2)]
    pro = []
    for F, (t, i) in enumerate(frs):
        if F < 28 * 14:
            pos = 56 * t + P[i]
        else:
            k = F - 28 * 14
            pos = NM + (P[k] if k < 4 else 4 * k - 14)
        for half in range(2):
            (side[pos + half] if pos + half >= 0 else pro).append(rd_w(F, t, i, half))
        for jm in range(4):
            d = R("v", acc1(i >> 1, i & 1, jm))
            c = "0" if t == 0 else d
            mf.append((f"v_mfma_f32_16x16x32_bf16 {d}, {R('a', wfrag_reg(F))}, {R('a', aXF + 16 * xset(t) + 4 * jm)}, {c}",
                       [("wf", F), ("xf", t, jm)], []))
    xpos = {}
    for t in range(1, 32):
        for jm in range(4):
            if t == 29:
                pos = 56 * 27 + 38 + jm
            elif t == 30:
                pos = NM - 4 + 3 * jm - 6
            elif t == 31:
                pos = NM + 4 * jm + 1
            elif t & 1:
                pos = 56 * (t - 1) + 2 + 3 * jm
            else:
                pos = 56 * (t - 1) + 34 + jm
            xpos[t, jm] = pos
            side[pos].append(rd_x(t, jm))

    beta = lambda t: 56 * t + 43

    def barrier(t):
        def f():
            s, p = (t + 1) >> 1, (t + 1) & 1
            need = [("W", s, q) for q in (range(4) if p == 0 else range(7))]
            if t == 27:
                need = [("W", s2, q) for s2 in (14, 15) for q in range(7)]
            b.wait(vm=need, lg=[("wf", 14 * t + 13)])
            e("s_barrier")
        return f
    for t in range(28):
        side[beta(t)].append(barrier(t))

    items = []
    for s in range(2, 16):
        prev = max([u for u in range(s) if sig(u) == sig(s)], default=None)
        for q in range(7):
            early = -1 if prev is None else beta(2 * prev + (q >= 3))
            dead = beta(min(2 * s - 1 + (q >= 4), 27))
            if prev is None and nsig == 2:
                early = beta(23)
            items.append([early, dead, "W", s, q])
        for q in range(8):
            early = xpos[2 * (s - 2) + 1, q >> 1] + 6
            items.append([early, xpos[2 * s, q >> 1], "X", s, q])
    pos = 1
    lastk = {"W": (1, 6), "X": (1, 7)}
    while items:
        def nxt(it):
            s, q = lastk[it[2]]
            n = 7 if it[2] == "W" else 8
            return (it[3], it[4]) == ((s, q + 1) if q + 1 < n else (s + 1, 0))
        c = [it for it in items if it[0] < pos and nxt(it)]
        if not c:
            pos += 1
            continue
        it = min(c, key=lambda x: x[1])
        items.remove(it)
        lastk[it[2]] = (it[3], it[4])
        assert pos + 1 < it[1], it
        if O.get("verbose"):
            print(it[2], it[3], it[4], "early", it[0], "issue", pos + 1, "dead", it[1], "ahead", it[1] - pos - 1)
        _, _, k, s, q = it
        if k == "W":
            side[pos].append(lambda s=s, q=q: pre_w(s, q))
            side[pos + 1].append(lambda s=s, q=q: dma_w(s, q))
        else:
            def f(s=s, q=q):
                b.wait(lg=[("xf", 2 * (s - 2) + 1, q >> 1)])
                pre_x(s, q)
            side[pos].append(f)
            side[pos + 1].append(lambda s=s, q=q: dma_x(s, q))
        last_dma = pos + 1
        pos += gap

    slow = []

    def count_in():
        e(f"s_cmp_eq_u32 s{sCP}, 0")
        e("s_cbranch_scc1 L_announce")
        e("L_announced:")
        slow.extend(["L_announce:", f"v_mov_b32 v{vFV}, 1", "s_mov_b64 exec, 1",
                     f"buffer_store_dword v{vFV}, off, {R('s', sG)}, 0 sc1", "s_mov_b64 exec, -1", "s_branch L_announced"])
    side[3].append(count_in)


    def poll_issue(tag, srd, voff, soff):
        def f():
            if voff is None:
                b.vm(f"buffer_load_dword v{vFV}, off, {R('s', srd)}, s{soff} sc1", tag)
            else:
                b.vm(f"buffer_load_dword v{vFV}, v{voff}, {R('s', srd)}, s{soff} offen sc1", tag)
        return f

    def poll_check(tag, srd, voff, soff, val):
        def f():
            b.wait(vm=[tag])
            e(f"v_cmp_gt_u32 vcc, {val}, v{vFV}")
            e(f"s_cbranch_vccnz L_slow_{tag}")
            e(f"L_back_{tag}:")
            ld = (f"buffer_load_dword v{vFV}, off, {R('s', srd)}, s{soff} sc1" if voff is None else
                  f"buffer_load_dword v{vFV}, v{voff}, {R('s', srd)}, s{soff} offen sc1")
            slow.extend([f"L_slow_{tag}:", f"s_mov_b32 s{sSPIN}, 0", f"L_spin_{tag}:", ld,
                         f"s_add_u32 s{sSPIN}, s{sSPIN}, 1", f"s_cmp_gt_u32 s{sSPIN}, 0x40000",
                         f"s_cbranch_scc1 L_end", "s_waitcnt vmcnt(0)",
                         f"v_cmp_gt_u32 vcc, {val}, v{vFV}", f"s_cbranch_vccnz L_spin_{tag}", f"s_branch L_back_{tag}"])
        return f
    side[56 * 16 + 4].append(poll_issue("cnt", sG, None, sCC))
    side[56 * 19 + 4].append(poll_check("cnt", sG, None, sCC, 1))

    def addr_sets():
        for nb in range(4):
            e(f"v_add_u32 v{5 + nb}, 65536, v{vDR + nb}")
        for nb, v in enumerate((9, 10, 11, 1)):
            e(f"v_add_u32 v{v}, 131072, v{vDR + nb}")
        e("v_and_b32 v2, 15, v0")
        e("v_lshlrev_b32 v2, 11, v2")
        e(f"v_bfe_u32 v{vOUT}, v0, 4, 1")
        e(f"v_lshl_add_u32 v2, v{vOUT}, 5, v2")
        e(f"v_lshrrev_b32 v{vOUT}, 5, v0")
        e(f"v_lshl_add_u32 v{vOUT}, v{vOUT}, 4, v2")
    assert last_dma < NM - 8
    side[NM - 8].append(addr_sets)
    DRV = [[vDR + i for i in range(4)], [5, 6, 7, 8], [9, 10, 11, 1]]

    def unit_lds(slot):
        bank = [0, 0, 4, 4, 1, 1, 2, 2, 3, 3][slot]
        return bank * 32768 + (slot & 1) * 4096

    def unit_row(u, q):
        if u < 4:
            return 112 * (2 * u + (q & 1)) + 8 * (q >> 1)
        Pp, jj = (u - 4) >> 3, (u - 4) & 7
        return 112 * jj + 16 + 32 * Pp + 8 * q
    alt = [0]

    def pre_d(u, slot, q):
        set_m0(sM0X, unit_lds(slot))
        alt[0] ^= 1
        e(f"s_mov_b32 s{sA + alt[0]}, {unit_row(u, q) * 2048 - q * 1024}")

    def dma_d(u, slot, q):
        b.vm(f"buffer_load_dwordx4 v{vDD}, {R('s', sD)}, s{sA + alt[0]} offen offset:{q * 1024} lds", ("D", u, q))

    def rd_d(u, slot, reg, nb, half):
        off = unit_lds(slot) + half * 2048

        def f():
            b.wait(vm=[("D", u, 2 * half), ("D", u, 2 * half + 1)])
            b.lg(f"ds_read_b64_tr_b16 {R('a', reg + 4 * nb + 2 * half, 2)}, v{DRV[off >> 16][nb]} offset:{off & 65535}", ("df", u, nb, half))
        return f

    def epi(blk):
        ins = []
        for j0 in range(0, 4, 2):
            g = [acc1(blk, 0, j0) + x for x in range(8)]
            u = [acc1(blk, 1, j0) + x for x in range(8)]
            t = [vTMP + x for x in range(8)]
            ins += [f"v_mul_f32 v{t[x]}, s{sNL2E}, v{g[x]}" for x in range(8)]
            ins += [f"v_exp_f32 v{t[x]}, v{t[x]}" for x in range(8)]
            ins += [f"v_add_f32 v{t[x]}, 1.0, v{t[x]}" for x in range(8)]
            ins += [f"v_rcp_f32 v{t[x]}, v{t[x]}" for x in range(8)]
            ins += [f"v_mul_f32 v{t[x]}, v{g[x]}, v{t[x]}" for x in range(8)]
            ins += [f"v_mul_f32 v{t[x]}, v{t[x]}, v{u[x]}" for x in range(8)]
            for x in range(0, 8, 2):
                jm = j0 + (x >> 2)
                if blk == 0:
                    d = acc1(0, 0, j0) + (x >> 1)
                elif blk & 1:
                    d = acc1(blk, 0, jm) + ((x >> 1) & 1)
                else:
                    d = acc1(blk - 1, 0, jm) + 2 + ((x >> 1) & 1)
                ins.append(f"v_cvt_pk_bf16_f32 v{d}, v{t[x]}, v{t[x + 1]}")
            if blk == 0:
                d = acc1(0, 0, j0)
                ins.append("s_nop 1")
                ins.append(f"v_permlane32_swap_b32 v{d}, v{d + 2}")
                ins.append(f"v_permlane32_swap_b32 v{d + 1}, v{d + 3}")
                ins.append(("st", f"buffer_store_dwordx4 {R('v', d)}, v{vHL}, {R('s', sHS)}, s{sHLB if j0 else sHLA} offen sc1", ("H", 1)))
            elif not blk & 1:
                for jm in (j0, j0 + 1):
                    ins.append(("st", f"buffer_store_dwordx4 {R('v', acc1(blk - 1, 0, jm))}, v{vL16}, {R('s', sHS)}, s{sHB if j0 else sHA} offen offset:{(jm & 1) * 1024} sc1", ("H", 1 + blk // 2)))
                if blk < 6:
                    r = sHB if j0 else sHA
                    ins.append(f"s_add_u32 s{r}, s{r}, 65536")
        return ins

    def emit_epi(x):
        if isinstance(x, tuple):
            b.vm(x[1], x[2])
        else:
            e(x)

    def flag(stage):
        def f():
            b.wait(vm=[("H", stage)])
            e(f"v_mov_b32 v2, {stage}")
            e("s_mov_b64 exec, 1")
            b.vm(f"buffer_store_dword v2, off, {R('s', sF)}, s{sFP} sc1")
            e("s_mov_b64 exec, -1")
        return f

    cost = lambda x: 2 if isinstance(x, str) and ("exp" in x or "rcp" in x) else 1
    valu = defaultdict(list)
    for blk in range(6):
        ins = epi(blk)
        tot = sum(map(cost, ins))
        acc = 0
        for x in ins:
            valu[NM + 32 * (blk + 1) + 2 + (acc * 30) // tot].append(x)
            acc += cost(x)
    side[NM + 32 * 3 - 4].append(flag(1))
    side[NM + 32 * 5 - 4].append(flag(2))
    side[NM + 32 * 7 - 4].append(flag(3))

    ureg = lambda u: aDF + 16 * u if u < 10 else aXF + 16 * ((u - 10) % 4)
    g2pos = lambda ks: NT + 32 * ks
    slot_free = {0: xpos[29, 3] + 8, 1: xpos[29, 3] + 8, 2: beta(27), 3: beta(27), 4: xpos[31, 3] + 8, 5: xpos[31, 3] + 8}
    slot_tag = {0: ("xf", 29, 3), 1: ("xf", 29, 3), 4: ("xf", 31, 3), 5: ("xf", 31, 3)}
    for sl in range(6, 10):
        slot_free[sl] = NT
    pos = NM - 6
    LAT = O.get("lat", 64)
    rdpos = NM
    for u in range(28):
        sl = min(slot_free, key=lambda x: (slot_free[x], x))
        pos = max(pos, slot_free[sl] + 1)
        dg = tail_dma_gap if pos < NT else 8
        for q in range(4):
            def f(u=u, sl=sl, q=q, tag=slot_tag.get(sl)):
                if tag is not None:
                    b.wait(lg=[tag])
                pre_d(u, sl, q)
            side[pos].append(f)
            side[pos + 1].append(lambda u=u, sl=sl, q=q: dma_d(u, sl, q))
            pos += dg
        if u < 10:
            r0 = max(pos + LAT, rdpos)
            r0 = min(r0, g2pos(u) - 20)
        elif u < 14:
            r0 = max(g2pos(u) - 64, pos + LAT, NT)
        else:
            r0 = max(g2pos(u - 4) + 32, min(g2pos(u) - 28, pos + LAT))
        r0 = max(r0, rdpos)
        assert r0 + 16 <= g2pos(u) - 2, (u, r0, g2pos(u))
        assert r0 > pos - dg + 1, (u, r0, pos)
        k = 0
        for half in range(2):
            for nb in range(4):
                side[r0 + 2 * k].append(rd_d(u, sl, ureg(u), nb, half))
                k += 1
        rdpos = r0 + 16
        slot_free[sl] = r0 + 20
        slot_tag[sl] = ("df", u, 3, 1)

    hreg = lambda H: ACC + 4 * (H % RH)
    halt = [0]

    def ld_h(H):
        ks, jl = H >> 3, H & 7

        def f():
            if jl & 3 == 0:
                halt[0] ^= 1
                e(f"s_mov_b32 s{sT0 + halt[0]}, {ks * 8192 + (jl >> 2) * 4096}")
            b.vm(f"buffer_load_dwordx4 {R('v', hreg(H))}, v{vL16}, {R('s', sHL)}, s{sT0 + halt[0]} offen offset:{(jl & 3) * 1024} sc1", ("h", H))
        return f
    for ks in range(28):
        for jl in range(8):
            H = 8 * ks + jl
            for nb in range(4):
                d = R("v", acc2(jl, nb))
                c = "0" if ks == 0 else d
                mf.append((f"v_mfma_f32_16x16x32_bf16 {d}, {R('a', ureg(ks) + 4 * nb)}, {R('v', hreg(H))}, {c}",
                           [("df", ks, nb, 1)], [("h", H)]))
            if H >= RH:
                pos = NT + 4 * (H - RH) + 3
                if jl == 0 and ks in (4, 12, 20):
                    st = {4: 2, 12: 3, 20: 4}[ks]
                    side[max(pos - flagpf, NT)].append(poll_issue(f"f{st}", sF, vFP, sFC))
                    side[pos].append(poll_check(f"f{st}", sF, vFP, sFC, st))
                side[pos].append(ld_h(H))
    side[NT + 40].append(flag(4))

    def transition():
        stamp()
        b.wait_all(lg=True)
        e("s_barrier")
        poll_issue("f1", sF, vFP, sFC)()
        e("s_nop 4")
        ins = epi(6)
        for x in ins:
            emit_epi(x)
        stamp()
        poll_check("f1", sF, vFP, sFC, 1)()
        stamp()
        for H in range(RH):
            ld_h(H)()

    b.wait(vm=[("W", 0, 3)])
    e("s_barrier")
    stamp()
    for jm in range(4):
        rd_x(0, jm)()
    for f in pro:
        f()
    for n, (txt, lgt, vmt) in enumerate(mf):
        if n == NM:
            stamp()
        if n == NT:
            transition()
        b.wait(vm=vmt, lg=lgt)
        e(txt)
        for f in side.pop(n, []):
            f()
        for x in valu.pop(n, []):
            emit_epi(x)
    assert not side and not valu, (list(side), list(valu))
    stamp()

    b.wait_all(lg=True)
    e("s_barrier")
    e(f"s_mul_i32 s{sA}, s{sWV}, 24576")
    e(f"v_add_u32 v2, s{sA}, v{vL16}")
    for p in range(1, 4):
        e(f"s_sub_u32 s{sA}, s{sWV}, {p}")
        e(f"s_and_b32 s{sA}, s{sA}, 3")
        e(f"s_mul_i32 s{sA}, s{sA}, 24576")
        e(f"v_add_u32 v{2 + p}, s{sA}, v{vL16}")
    for p in range(1, 4):
        for k in range(8):
            b.lg(f"ds_write_b128 v2, {R('v', acc2(2 * p + (k >> 2), k & 3))} offset:{(p - 1) * 8192 + k * 1024}")
    b.wait_all(lg=True)
    e("s_barrier")
    for k in range(8):
        for p in range(1, 4):
            b.lg(f"ds_read_b128 {R('v', ACC + 32 * (p - 1) + 4 * k)}, v{2 + p} offset:{(p - 1) * 8192 + k * 1024}", ("r", p, k))
    e(f"s_mov_b32 s{sA}, 32768")
    for k in range(0, 8, 2):
        for kk in (k, k + 1):
            a = acc2(kk >> 2, kk & 3)
            for p in range(1, 4):
                b.wait(lg=[("r", p, kk)])
                s = ACC + 32 * (p - 1) + 4 * kk
                for x in (0, 2):
                    e(f"v_pk_add_f32 {R('v', a + x, 2)}, {R('v', a + x, 2)}, {R('v', s + x, 2)}")
        a = acc2(k >> 2, k & 3)
        for x in range(4):
            e(f"v_cvt_pk_bf16_f32 v{a + x}, v{a + 2 * x}, v{a + 2 * x + 1}")
        e("s_nop 1")
        e(f"v_permlane16_swap_b32 v{a}, v{a + 2}")
        e(f"v_permlane16_swap_b32 v{a + 1}, v{a + 3}")
        so = f"s{sA}" if k >> 2 else "0"
        b.vm(f"buffer_store_dwordx4 {R('v', a)}, v{vOUT}, {R('s', sO)}, {so} offen offset:{((k >> 1) & 1) * 64}")
    if stamps:
        stamp()
        e("s_waitcnt vmcnt(0)")
        stamp()
        e("s_memrealtime s[98:99]")
        e("s_waitcnt lgkmcnt(0)")
        e(f"s_mov_b32 s{sF + 2}, 0x100000")
        e(f"s_lshl2_add_u32 s{sA}, s2, s{sWV}")
        e(f"s_lshl_b32 s{sA}, s{sA}, 6")
        e(f"s_add_u32 s{sA}, s{sA}, {SOFF}")
        vals = [sST + 2 * i for i in range(nst[0])] + [100, 98]
        for i, r in enumerate(vals):
            e(f"v_mov_b32 v2, s{r}")
            e(f"buffer_store_dword v2, off, {R('s', sF)}, s{sA} offset:{4 * i}")
    e("s_endpgm")
    for x in slow:
        e(x)
    e("L_end:")
    e("s_endpgm")
    return b.out, nst[0]


HEADER = """; Fused SwiGLU FFN: out = (silu(x @ w_gate) * (x @ w_up)) @ w_down, one persistent launch.
; @launch grid=(256,1,1) block=(256,1,1) lds=163840
.amdgcn_target "amdgcn-amd-amdhsa--gfx950"
.text
.globl {k}
.p2align 8
.type {k},@function
{k}:
"""
FOOTER = """.section .rodata,"a"
.p2align 6
.amdhsa_kernel {k}
  .amdhsa_next_free_vgpr 512
  .amdhsa_next_free_sgpr 102
  .amdhsa_accum_offset 256
  .amdhsa_group_segment_fixed_size 0
  .amdhsa_kernarg_size 56
  .amdhsa_user_sgpr_count 2
  .amdhsa_user_sgpr_kernarg_segment_ptr 1
  .amdhsa_system_sgpr_workgroup_id_x 1
  .amdhsa_float_denorm_mode_32 3
.end_amdhsa_kernel
"""


def write(path, **kw):
    body, n = gen(**kw)
    with open(path, "w") as f:
        f.write(HEADER.format(k=KNAME))
        f.write("\n".join(x if x.endswith(":") else "    " + x for x in body) + "\n")
        f.write(FOOTER.format(k=KNAME))
    return n


if __name__ == "__main__":
    write(sys.argv[1] if len(sys.argv) > 1 else "standalone__swiglu_ffn__prompt.s")
```

```python
import sys
from collections import defaultdict

KNAME = "standalone__swiglu_ffn__prompt_kernel"
HOFF = 0x100000
FOFF = 0x0
XOFF = 0x1000000
SOFF = 0x80000


class B:
    def __init__(self):
        self.out = []
        self.vm_n = 0
        self.vm_tag = {}
        self.vm_done = 0
        self.lg_n = 0
        self.lg_tag = {}
        self.lg_done = 0

    def e(self, s):
        self.out.append(s)

    def vm(self, s, tag=None):
        if s.endswith(" lds") and " m0," in self.out[-1]:
            self.e("s_nop 0")
        self.e(s)
        self.vm_n += 1
        if tag is not None:
            self.vm_tag[tag] = self.vm_n

    def lg(self, s, tag=None):
        self.e(s)
        self.lg_n += 1
        if tag is not None:
            self.lg_tag[tag] = self.lg_n

    def issued(self, vm=(), lg=()):
        return all(t in self.vm_tag for t in vm) and all(t in self.lg_tag for t in lg)

    def needs(self, vm=(), lg=()):
        return (max([self.vm_tag[t] for t in vm], default=0) > self.vm_done or
                max([self.lg_tag[t] for t in lg], default=0) > self.lg_done)

    def wait(self, vm=(), lg=()):
        parts = []
        need = max([self.vm_tag[t] for t in vm], default=0)
        if need > self.vm_done:
            n = self.vm_n - need
            parts.append(f"vmcnt({min(n, 63)})")
            self.vm_done = need if n <= 63 else self.vm_n - 63
        need = max([self.lg_tag[t] for t in lg], default=0)
        if need > self.lg_done:
            n = self.lg_n - need
            parts.append(f"lgkmcnt({min(n, 15)})")
            self.lg_done = need if n <= 15 else self.lg_n - 15
        if parts:
            self.e("s_waitcnt " + " ".join(parts))

    def wait_all(self, vm=False, lg=False):
        parts = []
        if vm and self.vm_done < self.vm_n:
            parts.append("vmcnt(0)")
            self.vm_done = self.vm_n
        if lg and self.lg_done < self.lg_n:
            parts.append("lgkmcnt(0)")
            self.lg_done = self.lg_n
        if parts:
            self.e("s_waitcnt " + " ".join(parts))


class Op:
    __slots__ = ("kind", "fn", "pos", "dead", "deps", "done", "seq", "at")

    def __init__(self, kind, fn, pos, dead, deps, seq):
        self.kind, self.fn, self.pos, self.dead, self.deps, self.seq = kind, fn, pos, dead, deps, seq
        self.done = False
        self.at = None


def R(p, a, n=4):
    return f"{p}[{a}:{a + n - 1}]"


sX, sW, sD, sHS, sHL, sO, sF, sG = 8, 12, 16, 20, 24, 28, 32, 36
sWV = 40
sT0 = 41
sXQ = 48
sM0X, sM0W, sTI = 56, 57, 58
sHA, sHB, sHLA, sHLB = 59, 60, 61, 62
sFP, sFC, sCP, sNL2E = 63, 64, 65, 66
sSPIN = 67
sA, sB_ = 68, 69
sM0H, sXO, sXI, sXFO, sXFI = 0, 1, 41, 42, 43
sX0 = 6
sTW, sTX = 70, 74
sK = 80
sST = 78
vXD, vXR, vWD, vWR, vDD, vDR, vL16, vHL, vFP, vFV, vTMP, vWR2, vOUT = 1, 3, 5, 12, 13, 14, 18, 19, 20, 21, 22, 30, 31
ACC = 32
aXF, aWF, aDF = 0, 64, 88
RW = 6
RH = 8
TDPOS = (300, 700, 760, 1150)
WST = 64 * 7168


def acc1(b, gu, jm):
    return ACC + 32 * b + 16 * gu + 4 * jm


def acc2(jl, nb):
    return 128 + 16 * jl + 4 * nb


def gen(stamps=False, **O):
    b = B()
    e = b.e
    nst = [0]
    krot = O.get("krot", 1)

    def stamp():
        if stamps:
            i = sST + nst[0]
            assert i < 98
            nst[0] += 1
            b.wait_all(lg=True)
            e("s_memtime s[98:99]")
            e("s_waitcnt lgkmcnt(0)")
            e(f"s_mov_b32 s{i}, s98")

    SIG = [65536, 131072, 94208]
    sig = lambda s: SIG[s % 3]
    slow = []

    if stamps:
        e("s_memrealtime s[100:101]")
        e(f"s_memtime s[{sST}:{sST + 1}]")
        nst[0] += 1
    e(f"s_load_dwordx8 s[{sK}:{sK + 7}], s[0:1], 0")
    e(f"s_load_dwordx4 s[{sK + 8}:{sK + 11}], s[0:1], 32")
    e(f"s_load_dwordx2 s[{sF}:{sF + 1}], s[0:1], 48")
    e("s_cmp_ge_u32 s2, 256")
    e("s_cbranch_scc1 L_end")
    e("v_lshrrev_b32 v2, 6, v0")
    e("v_and_b32 v0, 63, v0")
    e(f"v_readfirstlane_b32 s{sWV}, v2")
    e("s_lshr_b32 s44, s2, 3")
    e(f"s_lshl2_add_u32 s{sTI}, s44, s{sWV}")
    if O.get("codepf", 1):
        e("s_getpc_b64 s[4:5]")
        e("L_pc:")
        e(f"s_lshl_b32 s{sA}, s{sTI}, 9")
        e(f"v_min_u32 v{vOUT}, 3, v0")
        e(f"v_lshl_add_u32 v{vOUT}, v{vOUT}, 7, s{sA}")
        e(f"v_min_u32 v{vOUT}, L_end-L_pc, v{vOUT}")
        b.vm(f"global_load_dword v{vFV}, v{vOUT}, s[4:5]")
    e("s_and_b32 s41, s2, 1")
    e("s_bfe_u32 s42, s2, 0x20001")
    e("s_bfe_u32 s43, s2, 0x20003")
    e("s_lshr_b32 s44, s2, 5")
    e("s_lshl2_add_u32 s45, s41, s43")
    e("s_lshl3_add_u32 s46, s42, s44")
    sMT, sJ, sMB, sNB = 45, 46, 47, 3
    e(f"v_lshlrev_b32 v{vL16}, 4, v0")
    e("v_mul_u32_u24 v22, 4682, v0")
    e(f"s_movk_i32 s{sHA}, 14112")
    e(f"s_movk_i32 s{sHB}, -7168")

    def w_off(q, base):
        if q:
            e(f"v_add_u32 v22, {64 * 4682}, v22")
        e("v_lshrrev_b32 v23, 16, v22")
        e("v_and_b32 v24, 3, v23")
        e(f"v_mad_u32_u24 v23, v23, s{sHA}, v{base}")
        e(f"v_mad_i32_i24 v{vWD + q}, v24, s{sHB}, v23")
    for q in range(4):
        w_off(q, vL16)
    e("v_lshrrev_b32 v25, 3, v0")
    e("v_lshrrev_b32 v26, 4, v0")
    e("v_and_b32 v27, 7, v0")
    e("v_xor_b32 v23, v27, v26")
    e("v_lshlrev_b32 v25, 11, v25")
    e(f"v_lshl_add_u32 v{vXD}, v23, 4, v25")
    e(f"v_xor_b32 v{vXD + 1}, 64, v{vXD}")
    e(f"s_add_u32 s{sA}, s43, s44")
    for i in range(4):
        if krot:
            e(f"s_and_b32 s{sB_}, s{sA}, 3")
            e(f"s_mul_i32 s{sTW + i}, s{sB_}, {WST}")
            e(f"s_lshl_b32 s{sTX + i}, s{sB_}, 7")
            if i < 3:
                e(f"s_add_u32 s{sA}, s{sA}, 1")
        else:
            e(f"s_mov_b32 s{sTW + i}, {i * WST}")
            e(f"s_movk_i32 s{sTX + i}, {i * 128}")
    e(f"s_lshr_b32 s{sA}, s{sWV}, 1")
    e(f"s_mul_i32 s{sA}, s{sA}, {4 * 7168}")
    e(f"s_mul_i32 s{sB_}, s{sJ}, 224")
    e(f"s_add_u32 s{sA}, s{sA}, s{sB_}")
    e(f"s_mov_b32 s{sW + 2}, {3 * WST + 60 * 7168}")
    e(f"s_mov_b32 s{sW + 3}, 0x20000")
    e(f"s_lshl2_add_u32 s{sB_}, s{sMT}, s{sWV}")
    e(f"s_lshl_b32 s{sB_}, s{sB_}, 17")
    e(f"s_mov_b32 s{sX + 2}, {63 * 2048 + 128}")
    e(f"s_mov_b32 s{sX + 3}, 0x20000")
    for q in range(8):
        e(f"s_mov_b32 s{sXQ + q}, {q * 16384 - (q & 3) * 1024}")
    e(f"s_lshl_b32 s{sM0X}, s{sWV}, 14")
    e(f"s_mul_i32 s{sM0W}, s{sWV}, 7168")
    e(f"s_add_u32 m0, s{sM0W}, {sig(0)}")
    e(f"s_bitcmp1_b32 s{sWV}, 0")
    e("s_waitcnt lgkmcnt(0)")
    e(f"s_cselect_b32 s{sW}, s{sK + 4}, s{sK + 2}")
    e(f"s_cselect_b32 s{sW + 1}, s{sK + 5}, s{sK + 3}")
    stamp()
    e(f"s_add_u32 s{sW}, s{sW}, s{sA}")
    e(f"s_addc_u32 s{sW + 1}, s{sW + 1}, 0")

    m0_state = [(sM0W, sig(0))]

    def m0_ops(sreg, off):
        if m0_state[0] == (sreg, off):
            return []
        m0_state[0] = (sreg, off)
        return [[f"s_add_u32 m0, s{sreg}, {off}" if off else f"s_mov_b32 m0, s{sreg}"]]

    def pre_w(s, q):
        g = m0_ops(sM0W, sig(s) + (q >> 2) * 4096)
        if q == 0 and s and s % 4 == 0:
            g.append([f"s_add_u32 s{sW}, s{sW}, {4 * WST}", f"s_addc_u32 s{sW + 1}, s{sW + 1}, 0"])
        return g

    def dma_w(s, q):
        b.vm(f"buffer_load_dwordx4 v{vWD + q}, {R('s', sW)}, s{sTW + (s & 3)} offen offset:{(q & 3) * 1024} lds", ("W", s, q))

    def pre_x(s, q):
        g = m0_ops(sM0X, (2 * s + (q >> 2)) % 3 * 4096)
        if q == 0:
            if s and s % 4 == 0:
                g.append([f"s_add_u32 s{sX0}, s{sX0}, 512", f"s_addc_u32 s{sX0 + 1}, s{sX0 + 1}, 0"])
            g.append([f"s_add_u32 s{sX}, s{sX0}, s{sTX + (s & 3)}", f"s_addc_u32 s{sX + 1}, s{sX0 + 1}, 0"])
        return g

    def dma_x(s, q):
        b.vm(f"buffer_load_dwordx4 v{vXD + (q & 1)}, {R('s', sX)}, s{sXQ + q} offen offset:{(q & 3) * 1024} lds", ("X", s, q))

    def now(groups):
        for g in groups:
            for x in g:
                e(x)

    for q in range(4):
        now(pre_w(0, q))
        dma_w(0, q)
    e(f"s_add_u32 s{sX0}, s{sK}, s{sB_}")
    e(f"s_addc_u32 s{sX0 + 1}, s{sK + 1}, 0")
    for q in range(8):
        now(pre_x(0, q))
        dma_x(0, q)
    e(f"v_add_u32 v28, 4096, v{vL16}")
    for q in range(4, 7):
        w_off(q, 28)
    pro_items = [("W", 0, q) for q in range(4, 7)] + [("X", 1, q) for q in range(4)] + [("W", 1, q) for q in range(7)]
    npro = O.get("npro", 3)
    for k, s_, q in pro_items[:npro]:
        now((pre_w if k == "W" else pre_x)(s_, q))
        (dma_w if k == "W" else dma_x)(s_, q)

    map2 = O.get("map2", 3)
    if map2 == 0:
        e("s_lshl2_add_u32 s47, s42, s43")
        e(f"s_mov_b32 s{sA}, s44")
    elif map2 == 1:
        e(f"s_lshr_b32 s{sA}, s42, 1")
        e(f"s_lshl3_add_u32 s47, s{sA}, s44")
        e(f"s_and_b32 s{sA}, s42, 1")
        e(f"s_lshl2_add_u32 s{sA}, s{sA}, s43")
    elif map2 in (2, 3):
        if map2 == 2:
            e(f"s_and_b32 s{sA}, s2, 3")
            e(f"s_lshl2_add_u32 s47, s{sA}, s43")
            e(f"s_mov_b32 s{sA}, s44")
        else:
            e("s_lshl3_add_u32 s47, s41, s44")
            e(f"s_and_b32 s{sA}, s42, 1")
            e(f"s_lshl2_add_u32 s{sA}, s{sA}, s43")
        e("s_lshr_b32 s41, s42, 1")
        e("s_xor_b32 s41, s41, 1")
    else:
        e("s_xor_b32 s41, s41, 1")
        if map2 == 4:
            e(f"s_and_b32 s{sA}, s42, 1")
            e(f"s_lshl1_add_u32 s{sA}, s41, s{sA}")
            e(f"s_lshl2_add_u32 s47, s{sA}, s43")
            e(f"s_mov_b32 s{sA}, s44")
        else:
            e("s_lshl3_add_u32 s47, s41, s44")
            e(f"s_and_b32 s{sA}, s42, 1")
            e(f"s_lshl2_add_u32 s{sA}, s{sA}, s43")
        e("s_lshr_b32 s41, s42, 1")
    e(f"s_and_b32 s{sB_}, s{sWV}, 1")
    e(f"s_lshl1_add_u32 s3, s{sA}, s{sB_}")
    e(f"s_lshr_b32 s{sA}, s{sWV}, 1")
    e(f"s_lshl1_add_u32 s{sSPIN}, s41, s{sA}")
    e(f"s_lshl_b32 s{sM0H}, s{sA}, 14")
    e(f"s_lshl_b32 s{sB_}, s{sB_}, 10")
    e(f"v_add_u32 v29, s{sB_}, v{vL16}")
    e(f"v_add_u32 v28, s{sM0H}, v{vL16}")
    e(f"s_add_u32 s{sM0H}, s{sM0H}, s{sB_}")
    sWQ = sSPIN
    e("v_lshlrev_b32 v23, 1, v26")
    e("v_xor_b32 v23, v27, v23")
    e(f"v_lshl_add_u32 v{vDD}, v23, 4, v25")
    e("v_and_b32 v22, 15, v0")
    e("v_lshrrev_b32 v24, 1, v22")
    e("v_xor_b32 v24, v24, v26")
    e("v_lshlrev_b32 v24, 4, v24")
    e("v_lshl_add_u32 v24, v22, 7, v24")
    e(f"v_add_u32 v{vXR}, s{sM0X}, v24")
    e(f"v_xor_b32 v{vXR + 1}, 64, v{vXR}")
    e(f"v_lshlrev_b32 v{vFP}, 2, v22")
    e("v_lshrrev_b32 v24, 2, v0")
    e("v_and_b32 v25, 3, v0")
    e("v_mul_u32_u24 v26, 224, v24")
    e("v_lshl_add_u32 v26, v25, 3, v26")
    e(f"v_add_u32 v{vWR}, 65536, v26")
    e(f"v_add_u32 v{vWR2}, 131072, v26")
    e("v_lshlrev_b32 v26, 7, v24")
    e("v_lshl_add_u32 v26, v25, 3, v26")
    e(f"v_add_u32 v26, s{sM0X}, v26")
    e("v_bfe_u32 v27, v0, 3, 2")
    e(f"v_lshl_add_u32 v{vDR}, v27, 5, v26")
    for nb in range(1, 4):
        e(f"v_xor_b32 v{vDR + nb}, {32 * nb}, v{vDR}")
    e("v_lshrrev_b32 v24, 5, v0")
    e("v_and_b32 v25, 31, v0")
    e("v_lshlrev_b32 v25, 4, v25")
    e(f"v_lshl_add_u32 v{vHL}, v24, 10, v25")
    e(f"s_mov_b32 s{sF + 2}, 8192")
    e(f"s_mov_b32 s{sF + 3}, 0x20000")
    e(f"s_lshr_b32 s{sA}, s{sWV}, 1")
    e(f"s_lshl1_add_u32 s{sA}, s{sMT}, s{sA}")
    e(f"s_lshl2_add_u32 s{sB_}, s{sA}, s42")
    e(f"s_lshl_b32 s{sFP}, s{sB_}, 7")
    e(f"s_and_b32 s{sHA}, s{sWV}, 1")
    e(f"s_lshl1_add_u32 s{sHB}, s44, s{sHA}")
    e(f"s_lshl2_add_u32 s{sFP}, s{sHB}, s{sFP}")
    e("s_cmp_eq_u32 s2, 0")
    e("s_cbranch_scc1 L_clear")
    e("L_cleared:")
    slow.append("L_clear:")
    slow.extend(f"v_mov_b32 v{24 + x}, 0" for x in range(4))
    slow.extend([f"s_lshl_b32 s{sA}, s{sWV}, 11",
                 f"buffer_store_dwordx4 v[24:27], v{vL16}, {R('s', sF)}, s{sA} offen sc1",
                 f"buffer_store_dwordx4 v[24:27], v{vL16}, {R('s', sF)}, s{sA} offen offset:1024 sc1",
                 "s_branch L_cleared"])
    e("s_mov_b32 s46, s4")
    e("s_mov_b32 s45, s5")
    if O.get("touchd", 1):
        e(f"s_lshl2_add_u32 s{sA}, s2, s{sWV}")
        if O.get("tall"):
            e(f"s_mul_i32 s{sA}, s{sA}, {56 * 128}")
        else:
            e(f"s_lshr_b32 s{sB_}, s{sA}, 5")
            e(f"s_mul_i32 s{sB_}, s{sB_}, 56")
            e(f"s_and_b32 s{sA}, s{sA}, 31")
            e(f"s_add_u32 s{sA}, s{sA}, s{sB_}")
            e(f"s_add_u32 s{sA}, s{sA}, 24")
            e(f"s_lshl_b32 s{sA}, s{sA}, 12")
        TL = (56 if O.get("tall") else 32) // len(O.get("tdpos", TDPOS))
        e(f"v_min_u32 v22, {TL - 1}, v0")
        e(f"v_lshl_add_u32 v22, v22, 7, s{sA}")
        e(f"s_mov_b32 s4, s{sK + 6}")
        e(f"s_mov_b32 s5, s{sK + 7}")
    e(f"s_mul_i32 s{sA}, s{sWQ}, {896 * 2048}")
    e(f"s_lshl_b32 s{sB_}, s{sNB}, 7")
    e(f"s_add_u32 s{sA}, s{sA}, s{sB_}")
    e(f"s_add_u32 s{sD}, s{sK + 6}, s{sA}")
    e(f"s_addc_u32 s{sD + 1}, s{sK + 7}, 0")
    e(f"s_mov_b32 s{sD + 2}, {895 * 2048 + 128}")
    e(f"s_mov_b32 s{sD + 3}, 0x20000")
    e(f"s_lshr_b32 s{sA}, s{sFP}, 7")
    e(f"s_mul_i32 s{sA}, s{sA}, {28 * 8192}")
    e(f"s_add_u32 s{sA}, s{sA}, {HOFF}")
    e(f"s_add_u32 s{sHS}, s{sF}, s{sA}")
    e(f"s_addc_u32 s{sHS + 1}, s{sF + 1}, 0")
    e(f"s_mov_b32 s{sHS + 2}, {28 * 8192}")
    e(f"s_mov_b32 s{sHS + 3}, 0x20000")
    e(f"s_lshl2_add_u32 s{sA}, s{sMB}, s{sWQ}")
    e(f"s_lshl_b32 s{sFC}, s{sA}, 7")
    e(f"s_mul_i32 s{sA}, s{sA}, {28 * 8192}")
    e(f"s_add_u32 s{sA}, s{sA}, {HOFF}")
    e(f"s_add_u32 s{sHL}, s{sF}, s{sA}")
    e(f"s_addc_u32 s{sHL + 1}, s{sF + 1}, 0")
    e(f"s_mov_b32 s{sHL + 2}, {28 * 8192}")
    e(f"s_mov_b32 s{sHL + 3}, 0x20000")
    e(f"s_lshl_b32 s{sA}, s{sHA}, 1")
    e(f"s_xor_b32 s{sA}, s{sA}, s42")
    e(f"s_xor_b32 s{sA}, s{sA}, 3")
    e(f"s_xor_b32 s{sB_}, s{sA}, 1")
    e(f"s_lshl_b32 s{sA}, s{sA}, 11")
    e(f"s_lshl_b32 s{sB_}, s{sB_}, 11")
    e(f"s_add_u32 s{sHA}, s44, 4")
    e(f"s_lshl_b32 s{sHA}, s{sHA}, 13")
    e(f"s_add_u32 s{sHB}, s{sHA}, s{sB_}")
    e(f"s_add_u32 s{sHA}, s{sHA}, s{sA}")
    e(f"s_lshr_b32 s{sHLA}, s44, 1")
    e(f"s_lshl_b32 s{sHLA}, s{sHLA}, 13")
    e(f"s_and_b32 s{sHLB}, s44, 1")
    e(f"s_lshl_b32 s{sHLB}, s{sHLB}, 9")
    e(f"s_add_u32 s{sHLA}, s{sHLA}, s{sHLB}")
    e(f"s_add_u32 s{sHLB}, s{sHLA}, s{sB_}")
    e(f"s_add_u32 s{sHLA}, s{sHLA}, s{sA}")
    e(f"s_lshl2_add_u32 s{sA}, s{sMB}, s{sWQ}")
    e(f"s_lshl_b32 s{sA}, s{sA}, 16")
    e(f"s_lshl_b32 s{sB_}, s{sNB}, 7")
    e(f"s_add_u32 s{sA}, s{sA}, s{sB_}")
    e(f"s_add_u32 s{sO}, s{sK + 8}, s{sA}")
    e(f"s_addc_u32 s{sO + 1}, s{sK + 9}, 0")
    e(f"s_mov_b32 s{sO + 2}, {31 * 2048 + 128}")
    e(f"s_mov_b32 s{sO + 3}, 0x20000")
    e(f"s_mov_b32 s{sG}, s{sK + 10}")
    e(f"s_mov_b32 s{sG + 1}, s{sK + 11}")
    e(f"s_mov_b32 s{sG + 2}, 256")
    e(f"s_mov_b32 s{sG + 3}, 0x20000")
    e(f"s_or_b32 s{sCP}, s2, s{sWV}")
    e(f"s_mov_b32 s{sNL2E}, 0xbfb8aa3b")
    e("s_mov_b32 s47, s45")
    e(f"s_lshl2_add_u32 s{sXFO}, s{sNB}, s{sFC}")
    e(f"s_add_u32 s{sXFO}, s{sXFO}, 64")
    e(f"s_xor_b32 s{sXFI}, s{sXFO}, 256")
    e(f"s_lshr_b32 s{sA}, s{sFC}, 3")
    e(f"s_add_u32 s{sA}, s{sA}, s{sNB}")
    e(f"s_lshl_b32 s{sXO}, s{sA}, 13")
    e(f"s_xor_b32 s{sXI}, s{sXO}, {32 << 13}")

    ops = []

    def add(kind, fn, pos, dead=None, deps=()):
        if isinstance(fn, (list, tuple)):
            g = list(fn)
            fn = lambda g=g: [e(x) for x in g]
        o = Op(kind, fn, pos, pos + 12 if dead is None else dead, [d for d in deps if d is not None], len(ops))
        ops.append(o)
        return o

    slots = []
    valu = defaultdict(list)
    NM = 28 * 56
    NT = NM + 224
    NE = 8
    N2 = NT + NE
    xset = lambda t: t & 3
    wreg = lambda F: aWF + 4 * (F % RW)

    def rd_w(F, t, i, half):
        s, p, gu, blk = t >> 1, t & 1, i & 1, i >> 1
        off = sig(s) + (gu + 2 * half) * 7168 + p * 3584 + blk * 32
        v, off = (vWR, off - 65536) if off < 131072 else (vWR2, off - 131072)
        r = wreg(F) + 2 * half
        return lambda: b.lg(f"ds_read_b64_tr_b16 {R('a', r, 2)}, v{v} offset:{off}", ("wf", F, half))

    def rd_x(t, jm):
        s, p = t >> 1, t & 1
        return lambda: b.lg(f"ds_read_b128 {R('a', aXF + 16 * xset(t) + 4 * jm)}, v{vXR + p} offset:{(2 * s + (jm >> 1)) % 3 * 4096 + (jm & 1) * 2048}", ("xf", t, jm))

    beta = lambda t: 56 * t + O.get("beta", 42)
    P = [-12, -9, -6, -3, 0, 3, 6, 9, 12, 16, 20, 24, 28, 32]
    frs = [(t, i) for t in range(28) for i in range(14)]
    frs += [(28 + tt, 2 * blk + gu) for blk in range(7) for tt in range(4) for gu in range(2)]
    pro = []
    bar = {}
    dmaop = {}
    wrd = {}
    prev = None
    barw = {}
    nb2 = O.get("nb2", 4)
    for F, (t, i) in enumerate(frs):
        if F < 28 * 14:
            pos = 56 * t + P[i]
        else:
            k = F - 28 * 14
            pos = NM + (P[k] if k < 4 else 4 * k - 14)
        for half in range(2):
            if pos < 0:
                pro.append(rd_w(F, t, i, half))
            else:
                prev = add("D", rd_w(F, t, i, half), pos + half, 4 * F - 4, [prev, bar.get(F // 14 - 1) if F % 14 == 0 and F <= 28 * 14 else None])
                wrd[F, half] = prev
        if F < 28 * 14 and i == 13 and (t & 1 or t < nb2):
            s, p = (t + 1) >> 1, (t + 1) & 1
            need = [("W", s, q) for q in (range(4) if p == 0 and t + 1 < nb2 else range(7))]
            if t == 27:
                need = [("W", s2, q) for s2 in (14, 15) for q in range(7)]
            barw[t] = add("S", lambda need=need, F=F: b.wait(vm=need, lg=[("wf", F, 1)]), beta(t), beta(t) + 1, [prev])
            bar[t] = add("S", ["s_barrier" if not O.get("nobar") or t < 4 or t == 27 else "s_nop 0"], beta(t) + 1, beta(t) + 2, [barw[t]])
        for jm in range(4):
            d = R("v", acc1(i >> 1, i & 1, jm))
            c = "0" if t == 0 else d
            slots.append((f"v_mfma_f32_16x16x32_bf16 {d}, {R('a', wreg(F))}, {R('a', aXF + 16 * xset(t) + 4 * jm)}, {c}",
                          [("wf", F, 1), ("xf", t, jm)], []))
    xpos = {}
    xrd = {}
    xw = {}
    for t in range(1, 32):
        for jm in range(4):
            s, a = t >> 1, jm >> 1
            k = 2 * (jm & 1) + (t & 1)
            if t == 1:
                pos = 2 + 3 * jm
            elif s == 1:
                pos = 56 + (18, 34)[a] + k
            elif t == 30:
                pos = (NM - 10, NM - 7, NM + 4, NM + 5)[jm]
            elif t == 31:
                pos = (NM + 0, NM + 1, NM + 8, NM + 9)[jm]
            else:
                pos = 56 * (2 * (s - 1) + a) + 34 + k
            xpos[t, jm] = pos
            if t > 1 and (s, a) not in xw:
                xw[s, a] = add("S", lambda s=s, a=a: b.wait(vm=[("X", s, 4 * a + 3)]), pos - 1, pos + 4)
            xrd[t, jm] = add("D", rd_x(t, jm), pos, pos + 5, [xw.get((s, a))])
    xlast = lambda s, a: max(((t, jm) for t in (2 * s, 2 * s + 1) for jm in (2 * a, 2 * a + 1) if (t, jm) in xpos), key=lambda x: xpos[x])
    xall = lambda s, a: [(t, jm) for t in (2 * s, 2 * s + 1) for jm in (2 * a, 2 * a + 1)]

    usets = ([("a", aDF + 16 * i) for i in range(10)] + [("v", r) for r in (48, 32, 80, 96, 64)] + [("a", 32 + 16 * i) for i in range(3)]
             + [("v", 112)])
    NS = len(usets)
    ureg = lambda u: usets[u % NS]
    unit_lds = lambda slot: slot * 4096

    def unit_row(u, q):
        if u < 4:
            return 112 * (2 * u + (q & 1)) + 8 * (q >> 1)
        return 112 * ((u - 4) & 7) + 16 + 32 * ((u - 4) >> 3) + 8 * q

    def pre_d(u, sl, q):
        return m0_ops(sM0X, unit_lds(sl)) + [[f"s_mov_b32 s{sA}, {unit_row(u, q) * 2048 - q * 1024}"]]

    def dma_d(u, q):
        if u >= O.get("nod", 99):
            b.vm_tag["D", u, q] = 0
            return
        b.vm(f"buffer_load_dwordx4 v{vDD}, {R('s', sD)}, s{sA} offen offset:{q * 1024} lds", ("D", u, q))

    def rd_d(u, slot, nb, half):
        off = unit_lds(slot) + half * 2048
        p_, r_ = ureg(u)
        return lambda: b.lg(f"ds_read_b64_tr_b16 {R(p_, r_ + 4 * nb + 2 * half, 2)}, v{vDR + nb} offset:{off}", ("df", u, nb, half))

    chain = [None]

    def add_dma(groups, fn, pos, dead, deps=(), sdeps=()):
        deps = list(deps)
        p = chain[0]
        for gi, g in enumerate(groups):
            p = add("S", g, pos - len(groups) + gi, dead, [p] + list(sdeps))
        chain[0] = add("V", fn, pos, dead, [p] + deps)
        return chain[0]

    NPF = O.get("npf", 10)
    done = set(pro_items[:npro]) | {("W", 0, q) for q in range(4)} | {("X", 0, q) for q in range(8)}
    queue = {"W": [("W", s, q) for s in range(16) for q in range(7)], "X": [("X", s, q) for s in range(16) for q in range(8)],
             "D": [("D", u, q) for u in range(NPF) for q in range(4)]}
    for k in queue:
        queue[k] = [it for it in queue[k] if it not in done]
    gm, gh = O.get("gm", 8.0), O.get("gh", 5.0)
    d0, dper, dlat = O.get("d0", 150), O.get("dper", 138), O.get("dlat", 105)
    dlast = {}
    dfree = [0]

    def window(k, s, q):
        if k == "W":
            tb = 2 * (s - 3) + (q >= 3)
            if s >= 3 and tb not in bar:
                tb += 1
            tl = min(2 * s - 1 + (q >= 4), 27)
            if tl not in bar:
                tl -= 1
            return (beta(tb) + 2 if s >= 3 else 0), beta(tl), tb, tl
        if k == "X":
            hh = 2 * s + (q >> 2) - 3
            return (xpos[xlast(hh >> 1, hh & 1)] + 7 if hh >= 0 else 0), xw[s, q >> 2].pos, hh, None
        early = max(d0 + dper * s, dfree[0])
        return early, early + O.get("dprio", 60), None, None
    fpos = 1.0
    lastk = None
    while any(queue.values()):
        heads = [queue[k][0] for k in queue if queue[k]]
        avail = [it for it in heads if window(*it)[0] <= fpos]
        if not avail:
            fpos = min(window(*it)[0] for it in heads)
            continue
        k, s, q = min(avail, key=lambda it: window(*it)[1] + (O.get("alt", 0) if it[0] == lastk else 0))
        lastk = k
        queue[k].pop(0)
        early, lim, a1, a2 = window(k, s, q)
        pos = int(fpos)
        assert pos + 2 < lim or k == "D", (k, s, q, pos, lim)
        if O.get("verbose"):
            print(k, s, q, "early", early, "issue", pos, "lim", lim, "ahead", lim - pos)
        deps = []
        if k == "W":
            o = add_dma(pre_w(s, q), lambda s=s, q=q: dma_w(s, q), pos, pos + 3, [bar[a1]] if s >= 3 else [])
            barw[a2].deps.append(o)
        elif k == "X":
            if a1 >= 0 and q & 3 == 0:
                tags = [("xf",) + x for x in xall(a1 >> 1, a1 & 1)]
                deps.append(add("S", lambda tags=tags: b.wait(lg=tags), pos - 1, pos + 3, [xrd.get(x) for x in xall(a1 >> 1, a1 & 1)]))
            o = add_dma(pre_x(s, q), lambda s=s, q=q: dma_x(s, q), pos, pos + 3, deps)
            xw[s, q >> 2].deps.append(o)
        else:
            if s and q == 0:
                deps.append(add("S", lambda s=s: b.wait(lg=[("df", s - 1, 3, 1)]), pos - 1, pos + 3, [dlast[s - 1]]))
            o = add_dma(pre_d(s, 3, q), lambda s=s, q=q: dma_d(s, q), pos, pos + 3, deps)
            if q == 3:
                r0 = pos + dlat
                dp = add("S", lambda s=s: b.wait(vm=[("D", s, 3)]), r0 - 1, r0 + 6, [o])
                for kk in range(8):
                    dp = add("D", rd_d(s, 3, kk & 3, kk >> 2), r0 + kk, r0 + kk + 10, [dp])
                dlast[s] = dp
                dfree[0] = r0 + 16
        if k != "D":
            last_dma = pos
        fpos += (gm if (k != "D" and s % 4 == 0 and s and krot) else gh) * (O.get("gw", 1.0) if k == "W" else 1.0)

    touches = []
    if O.get("touchd", 1):
        tps = O.get("tdpos", TDPOS)
        for i, tp in enumerate(tps):
            touches.append(add("V", lambda: b.vm("global_load_dword v23, v22, s[4:5]", "touch"), tp, tp + 3))
            if i + 1 < len(tps):
                valu[tp + 5].append(f"v_add_u32 v22, {TL * 128}, v22")

    if O.get("codepf", 1):
        for tp in O.get("cpos", (1490,)):
            assert tp < NM - 60
            touches.append(add("V", lambda: b.vm(f"global_load_dword v24, v{vOUT}, s[46:47]", "touch"), tp, tp + 3))
    if touches:
        add("S", lambda: b.wait(vm=["touch"]), NM + 24, NM + 30, touches)

    add("X", [f"s_cmp_eq_u32 s{sCP}, 0", "s_cbranch_scc1 L_announce", "L_announced:"], beta(3) + 4, None, [bar[3]])
    slow.extend(["L_announce:", f"v_mov_b32 v{vFV}, 1", "s_mov_b64 exec, 1",
                 f"buffer_store_dword v{vFV}, off, {R('s', sG)}, 0 sc1", "s_mov_b64 exec, -1", "s_branch L_announced"])

    def poll(tag, srd, voff, soff, val, pos_issue, pos_check, deps=()):
        ld = (f"buffer_load_dword v{vFV}, off, {R('s', srd)}, {soff} sc1" if voff is None else
              f"buffer_load_dword v{vFV}, v{voff}, {R('s', srd)}, {soff} offen sc1")
        if O.get("nopoll"):
            val = 0
        o1 = add("V", lambda: b.vm(ld, tag), pos_issue, pos_issue + 3, deps)
        o2 = add("S", lambda: b.wait(vm=[tag]), pos_check - 1, pos_check + 1, [o1])
        o3 = add("X", [f"v_cmp_gt_u32 vcc, {val}, v{vFV}", f"s_cbranch_vccnz L_slow_{tag}", f"L_back_{tag}:"], pos_check, pos_check + 1, [o2])
        slow.extend([f"L_slow_{tag}:", f"s_mov_b32 s{sSPIN}, 0", f"L_spin_{tag}:", ld,
                     f"s_add_u32 s{sSPIN}, s{sSPIN}, 1", f"s_cmp_gt_u32 s{sSPIN}, 0x40000",
                     "s_cbranch_scc1 L_end", "s_waitcnt vmcnt(0)",
                     f"v_cmp_gt_u32 vcc, {val}, v{vFV}", f"s_cbranch_vccnz L_spin_{tag}", f"s_branch L_back_{tag}"])
        return o3
    pcnt = poll("cnt", sG, None, "0", 1, 56 * 16 + 50, 56 * 19 + 50)

    assert last_dma + 4 < NM - 24
    vHD, vHR, vHR2, vPW, vPR, vHD2 = 5, 6, 7, 8, 9, 10
    aset = [f"v_mov_b32 v{vHD}, v29", f"v_add_u32 v{vHR}, 65536, v28", f"v_add_u32 v{vHR2}, 131072, v28",
            f"v_lshl_add_u32 v{vPW}, v0, 2, s{sM0X}", f"v_xor_b32 v{vPR}, 32768, v{vPW}",
            f"v_sub_u32 v{vHD2}, v29, v{vL16}", f"v_lshl_add_u32 v{vHD2}, v{vHD2}, 3, v{vL16}"]
    aset += ["v_and_b32 v2, 15, v0", "v_lshlrev_b32 v2, 11, v2", f"v_bfe_u32 v{vOUT}, v0, 4, 1",
             f"v_lshl_add_u32 v2, v{vOUT}, 5, v2", f"v_lshrrev_b32 v{vOUT}, 5, v0", f"v_lshl_add_u32 v{vOUT}, v{vOUT}, 4, v2"]
    for i, x in enumerate(aset):
        valu[NM - 24 + i].append(x)

    hout = lambda blk, jm: acc1(blk, 0, jm) if blk < 5 else 112 + 4 * jm

    def epi(blk):
        ins = []
        for j0 in range(0, 4, 2):
            g = [acc1(blk, 0, j0) + x for x in range(8)]
            u = [acc1(blk, 1, j0) + x for x in range(8)]
            t = [vTMP + x for x in range(8)]
            ins += [f"v_mul_f32 v{t[x]}, s{sNL2E}, v{g[x]}" for x in range(8)]
            ins += [f"v_exp_f32 v{t[x]}, v{t[x]}" for x in range(8)]
            ins += [f"v_add_f32 v{t[x]}, 1.0, v{t[x]}" for x in range(8)]
            ins += [f"v_rcp_f32 v{t[x]}, v{t[x]}" for x in range(8)]
            ins += [f"v_mul_f32 v{t[x]}, v{g[x]}, v{t[x]}" for x in range(8)]
            ins += [f"v_mul_f32 v{t[x]}, v{t[x]}, v{u[x]}" for x in range(8)]
            for x in range(0, 8, 2):
                jm = j0 + (x >> 2)
                if blk == 0:
                    d = acc1(0, 0, j0) + (x >> 1)
                elif blk & 1:
                    d = hout(blk, jm) + ((x >> 1) & 1)
                else:
                    d = hout(blk - 1, jm) + 2 + ((x >> 1) & 1)
                ins.append(f"v_cvt_pk_bf16_f32 v{d}, v{t[x]}, v{t[x + 1]}")
            if blk == 0:
                d = acc1(0, 0, j0)
                ins.append("s_nop 1")
                ins.append(f"v_permlane32_swap_b32 v{d}, v{d + 2}")
                ins.append(f"v_permlane32_swap_b32 v{d + 1}, v{d + 3}")
                ins.append(("st", f"buffer_store_dwordx4 {R('v', d)}, v{vHL}, {R('s', sHS)}, s{sHLB if j0 else sHLA} offen {O.get('hst', 'sc1')}", 1, None))
            elif not blk & 1:
                r = sHB if j0 else sHA
                for jm in (j0, j0 + 1):
                    ins.append(("st", f"buffer_store_dwordx4 {R('v', hout(blk - 1, jm))}, v{vL16}, {R('s', sHS)}, s{r} offen offset:{(jm & 1) * 1024} {O.get('hst', 'sc1')}",
                                1 + blk // 2, f"s_add_u32 s{r}, s{r}, 65536" if jm & 1 and blk < 6 else None))
        return ins

    tslot = lambda n: 17 if n < NM else 19 if n < NM + 32 else O.get("tt", 34) if n < NT else 90 if n < N2 else O.get("t2", 17)
    T = {NM - 16: 0}
    for n in range(NM - 16, NT + NE + 896 + 200):
        T[n + 1] = T[n] + tslot(n)

    def at_time(t):
        n = NM - 16
        while T[n] < t:
            n += 1
        return n
    cost = lambda x: 0 if isinstance(x, tuple) else 2 if ("exp" in x or "rcp" in x) else 1
    last_store = {}
    stimes = []
    for blk in range(7):
        ins = epi(blk)
        tot = sum(map(cost, ins))
        acc = 0
        p0, n = (NM + 32 * (blk + 1) + 1, 30) if blk < 6 else (NT, NE - 1)
        pos = p0
        for x in ins:
            if isinstance(x, tuple):
                ps = max(pos + 1, at_time(stimes[-1] + O.get("sg", 500)) if stimes else 0)
                stimes.append(T[ps])
                o = add("V", lambda x=x: b.vm(x[1], ("H", x[2])) if not O.get("nost") else b.vm_tag.__setitem__(("H", x[2]), 0), ps, ps + 2, [last_store.get(x[2])])
                last_store[x[2]] = o
                if x[3]:
                    add("S", [x[3]], ps, ps + 8, [o])
            else:
                pos = p0 + (acc * n) // tot
                valu[pos].append(x)
                acc += cost(x)

    flagop = {}

    def flag(stage, pos, soff=sFP, val=None):
        valu[pos - 2].append(f"v_mov_b32 v2, {stage if val is None else val}")
        o = add("S", lambda: b.wait(vm=[("H", stage)]), pos - 1, pos + 1, [last_store[stage], pcnt])

        def f():
            e("s_mov_b64 exec, 1")
            b.vm(f"buffer_store_dword v2, off, {R('s', sF)}, s{soff} sc1")
            e("s_mov_b64 exec, -1")
        flagop[stage] = add("X", f, pos, pos + 2, [o])
    for st in range(1, 5):
        flag(st, at_time(T[last_store[st].pos] + O.get("fd", 1000)))
    assert last_store[3].pos + 2 < N2

    tw = add("S", lambda: b.wait(lg=[("wf", len(frs) - 1, 1)]), NT - 4, NT - 2, [prev])
    tbar = add("S", ["s_barrier"], NT - 3, NT - 1, [tw])
    for i in range(NE):
        slots.append((None, [], []))

    KL = 16
    JL = [0, 2, 1, 3, 4, 5, 6, 7]
    frags = [(ks, jl) for ks in range(28 - KL) for jl in range(8)] + [(ks, jl) for jl in JL for ks in range(28 - KL, 28)]
    hreg = lambda H: 4 * (H % RH)
    for H, (ks, jl) in enumerate(frags):
        for nb in range(4):
            d = R("v", acc2(jl, nb))
            c = "0" if ks == 0 else d
            slots.append((f"v_mfma_f32_16x16x32_bf16 {d}, {R(ureg(ks)[0], ureg(ks)[1] + 4 * nb)}, {R('a', hreg(H))}, {c}",
                          [("df", ks, nb, 1), ("hf", H)], []))
    NEND = len(slots)
    first_use = lambda u: N2 + 4 * min(H for H, (ks, jl) in enumerate(frags) if ks == u)
    last_use = lambda u: N2 + 4 * max(H for H, (ks, jl) in enumerate(frags) if ks == u) + 3
    HB = [131072, 65536, 98304]

    beta2 = lambda g: N2 + 64 * g + O.get("beta2", 46) if g >= 0 else NT + O.get("beta2i", 3)
    b2w, b2 = {}, {}
    b2lg = defaultdict(list)
    hp = None
    for g in range(-1, 14):
        if g >= 0:
            for i in range(16):
                H = 16 * g + i
                pos = N2 + 64 * g + max(3 * i - 15, 4 * i - 28)
                if pos < N2:
                    pos = max(beta2(-1) + 2, N2 - 3 + i // 3)
                off = HB[g % 3] + i * 1024
                v, off = (vHR, off - 65536) if off < 131072 else (vHR2, off - 131072)
                txt = f"ds_read_b128 {R('a', hreg(H))}, v{v} offset:{off}"
                hp = add("D", lambda txt=txt, H=H: b.lg(txt, ("hf", H)), pos, max(pos + 1, min(pos + 5, N2 + 4 * H - 4)), [hp, b2[g - 1] if i == 0 else None])
            b2lg[g].append(("hf", 16 * g + 15))
        if g < 13:
            b2w[g] = add("S", lambda g=g: b.wait(vm=[("h", 8 * g + 15)], lg=b2lg[g]), beta2(g), beta2(g) + 1, [hp])
            b2[g] = add("S", ["s_barrier" if not O.get("nobar") else "s_nop 0"], beta2(g) + 1, beta2(g) + 2, [b2w[g]])

    VG = O.get("vg", 85)
    LAT = O.get("lat", 900)
    pf = O.get("pollpf", 900)
    SK = O.get("sk", 150)

    hpos = {}
    h0 = NM + O.get("h0", 170)
    for pi in range(112):
        g, i = pi >> 3, pi & 7
        if g == 0:
            hpos[pi] = at_time(T[h0] + i * VG)
        elif g <= 2:
            hpos[pi] = at_time(T[NT - 1] + (pi - 8) * (VG if g == 1 else O.get("vg2", 110)))
        else:
            hpos[pi] = max(beta2(g - 3) + 3 + (8 if g < O.get("gq", 9) else O.get("hq", 8)) * i, hpos[pi - 1] + 4)
    slot_free, slot_dep = {}, {}
    for sl, (s_, a) in enumerate(((15, 0), (15, 1), (14, 1))):
        slot_free[sl] = xpos[xlast(s_, a)] + 7
        slot_dep[sl] = ([xrd[x] for x in xall(s_, a)], [("xf",) + x for x in xall(s_, a)])
    slot_free[3] = max(dfree[0], NM - 16)
    slot_dep[3] = ([dlast[NPF - 1]], [("df", NPF - 1, 3, 1)]) if NPF else ([], [])
    htimes = sorted(T[p_] for p_ in hpos.values())
    tn = 0
    rdiv = []
    dmas = []
    for u in range(NPF, 28):
        sl = min(slot_free, key=lambda x: (slot_free[x], x))
        dep, tag = slot_dep[sl]
        dps = []
        for q in range(4):
            tn = max(tn, T[slot_free[sl]])
            while True:
                gapd = VG if tn < T[N2] else O.get("vgd", 66)
                keep = gapd - 8 if tn < T[N2] else 50
                near = [t + keep for t in htimes if abs(t - tn) < keep]
                near += [t + SK for t in stimes if t - 40 < tn < t + SK]
                if not near:
                    break
                tn = max(near)
            pos = at_time(tn)
            dps.append(pos)
            tn += gapd
        ready = at_time(T[pos] + LAT)
        free = {10: NM + 64, 11: last_store[1].pos + 4, 12: NM + 96, 13: NM + 128, 14: last_store[2].pos + 4, 18: last_store[4].pos + 4}.get(
            u, NM if u < 10 else NT if u < NS else last_use(u - NS) + 1)
        r0 = max(min(ready, first_use(u) - 26), free, pos + 4)
        while True:
            sp = 1 if r0 < NT else 2 if r0 >= N2 else 0.25
            r1 = int(r0 + 8 * sp)
            clash = [iv for iv in rdiv if iv[0] < r1 and r0 < iv[1]]
            if not clash:
                break
            r0 = max(iv[1] for iv in clash)
        rdiv.append((r0, r1))
        assert r1 <= first_use(u) - 4, (u, r0, first_use(u))
        if O.get("verbose"):
            print("unit", u, "slot", sl, "dma", dps, "read", r0, "use", first_use(u))
        ws = []
        k = 0
        dp = {11: last_store[1], 14: last_store[2], 18: last_store[4]}.get(u)
        for half in range(2):
            p_ = int(r0 + sp * k)
            w = add("S", lambda u=u, half=half: b.wait(vm=[("D", u, 2 * half + 1)]), p_ - 1, p_ + 3)
            ws.append(w)
            for nb in range(4):
                p_ = int(r0 + sp * k)
                dp = add("D", rd_d(u, sl, nb, half), p_, min(p_ + 6, first_use(u) - 2), [w, dp])
                k += 1
        for q in range(4):
            dmas.append((dps[q], "D", (u, sl, q, dep, tag, ws)))
        dlast[u] = dp
        slot_free[sl] = r1 + 5
        slot_dep[sl] = ([dp], [("df", u, 3, 1)])
    for pi in range(112):
        dmas.append((hpos[pi], "h", pi))
    dmas.sort(key=lambda x: x[0])
    stage_of = lambda ks: 1 if ks < 4 else 2 + ((ks - 4) >> 3)
    seen = 0
    chk = pcnt
    for pos, kind, a in dmas:
        if kind == "D":
            u, sl, q, dep, tag, ws = a
            deps = []
            if q == 0:
                deps = [add("S", lambda tag=tag: b.wait(lg=tag), pos - 1, pos + 3, dep)]
            o = add_dma(pre_d(u, sl, q), lambda u=u, q=q: dma_d(u, q), pos, pos + 3, deps)
            if q & 1:
                ws[q >> 1].deps.append(o)
        else:
            pi = a
            ks, jl = frags[2 * pi]
            ks1 = frags[2 * pi + 1][0]
            g, i = pi >> 3, pi & 7
            deps = [bar[27] if g == 0 else tbar if g <= 2 else b2[g - 3]]
            if stage_of(ks1) > seen:
                seen = stage_of(ks1)
                chk = poll(f"f{seen}", sF, vFP, f"s{sFC}", seen, max(at_time(T[pos] - pf), chk.pos + 2), pos - 1, [chk])
                chk.deps.append(flagop[seen])
                assert flagop[seen].pos < chk.pos
                if O.get("verbose"):
                    print("poll", seen, "check at", pos - 1 - NM, "own flag at", flagop[seen].pos - NM)
            deps.append(chk)
            g_ = m0_ops(sM0H, HB[g % 3] + (i >> 1) * 4096) + [[f"s_mov_b32 s{sA}, {ks * 8192 + jl * 1024 - (i & 1) * 2048}"]]
            txt = f"buffer_load_dwordx4 v{vHD if ks1 == ks else vHD2}, {R('s', sHL)}, s{sA} offen offset:{(i & 1) * 2048} sc1 lds"
            o = add_dma(g_, lambda txt=txt, pi=pi: b.vm(txt, ("h", pi)), pos, pos + 3, deps)
            if i == 7:
                b2w[g - 1].deps.append(o)
                assert pos + 3 < beta2(g - 1), (pi, pos, beta2(g - 1))

    NQ = N2 + 32 * (28 - KL)
    eend = lambda jl: NQ + 64 * (JL.index(jl) + 1)
    add("X", [f"s_add_u32 s{sHS}, s{sF}, {XOFF}", f"s_addc_u32 s{sHS + 1}, s{sF + 1}, 0", f"s_mov_b32 s{sHS + 2}, {1024 * 8192}"],
        NQ, None, [last_store[4]])
    valu[NQ + 8].append(f"v_add_u32 v{vHL}, 4096, v{vL16}")
    add("S", [f"s_mov_b32 s{sB_}, 32768"], NQ + 10)

    def lds_swap(jl):
        off = (jl >> 2) * 8192 + (jl & 1) * 4096
        wp = add("S", lambda: b.wait(lg=[("df", u, 3, 1) for u in range(28)]), eend(jl) + 4, None, list(dlast.values()))
        for k in range(16):
            pos = eend(jl) + 6 + (O.get("wsp", 8) * k) // 4
            txt = f"ds_write_b32 v{vPW}, v{acc2(jl, 0) + k} offset:{off + k * 256}"
            wp = add("D", lambda txt=txt, k=k: b.lg(txt, ("pw", jl, k >> 2)), pos, pos + 3, [wp])
        g = min(g for g in b2 if beta2(g) > pos + 6)
        b2w[g].deps.append(wp)
        b2lg[g].append(("pw", jl, 3))
        rp = b2[g]
        for k in range(8):
            pos = beta2(g) + 3 + (3 * k) // 2
            txt = f"ds_read2st64_b32 {R('v', acc2(jl, 0) + 2 * k, 2)}, v{vPR} offset0:{off // 256 + 2 * k} offset1:{off // 256 + 2 * k + 1}"
            rp = add("D", lambda txt=txt, k=k: b.lg(txt, ("pr", jl, k >> 1)), pos, pos + 4, [rp])
        return rp
    xldl = {}
    for e_ in range(2):
        ra = lds_swap(e_)
        p0 = eend(2 + e_) + 4
        assert ra.pos + 4 < p0
        add("S", lambda e_=e_: b.wait(lg=[("pr", e_, 3)]), p0 - 1, p0, [ra])
        sp_ = None
        for k in range(4):
            pos = p0 + 2 * k
            a, s_ = acc2(2 + e_, k), acc2(e_, k)
            for x in range(4):
                valu[pos + (x >> 1)].append(f"v_add_f32 v{a + x}, v{a + x}, v{s_ + x}")
            ps = p0 + 2 + O.get("ssp", (16, 8))[e_] * k
            txt = f"buffer_store_dwordx4 {R('v', a)}, v{vHL if e_ else vL16}, {R('s', sHS)}, s{sXO} offen offset:{k * 1024} sc1"
            sp_ = add("V", lambda txt=txt, e_=e_: b.vm(txt, ("H", 5 + e_)), ps, ps + 2, [sp_])
        last_store[5 + e_] = sp_
        xf = sp_.pos + O.get("xfd", (64, 56))[e_]
        flag(5 + e_, xf, sXFO, 1 + e_)
        xc = min(xf + O.get("xpd", (140, 110))[e_], NEND - 8)
        chk = poll(f"fx{e_}", sF, None, f"s{sXFI}", 1 + e_, max(xc - O.get("xpf", 50), chk.pos + 2), xc, [chk])
        chk.deps.append(flagop[5 + e_])
        assert flagop[5 + e_].pos < chk.pos
        lp = chk
        for k in range(4):
            txt = f"buffer_load_dwordx4 {R('v', acc2(e_, k))}, v{vHL if e_ else vL16}, {R('s', sHS)}, s{sXI} offen offset:{k * 1024} sc1"
            lp = add("V", lambda txt=txt, k=k, e_=e_: b.vm(txt, ("xr", e_, k)), xc + 1 + k, xc + 3 + k, [lp])
        xldl[e_] = lp
        if O.get("verbose"):
            print("exchange", e_, "adds", p0, "flag", xf, "check", xc, "end", NEND)
    rc = [lds_swap(4), lds_swap(5)]

    def fin(e_, k2, pk):
        ins = []
        for k in (k2, k2 + 1):
            a = acc2(6 + e_, k)
            for s_ in (acc2(4 + e_, k), acc2(e_, k)):
                if pk:
                    ins += [f"v_pk_add_f32 {R('v', a + x, 2)}, {R('v', a + x, 2)}, {R('v', s_ + x, 2)}" for x in (0, 2)]
                else:
                    ins += [f"v_add_f32 v{a + x}, v{a + x}, v{s_ + x}" for x in range(4)]
        a = acc2(6 + e_, k2)
        ins += [f"v_cvt_pk_bf16_f32 v{a + x}, v{a + 2 * x}, v{a + 2 * x + 1}" for x in range(4)]
        ins += ["s_nop 1", f"v_permlane16_swap_b32 v{a}, v{a + 2}", f"v_permlane16_swap_b32 v{a + 1}, v{a + 3}"]
        so = f"s{sB_}" if e_ else "0"
        st = f"buffer_store_dwordx4 {R('v', a)}, v{vOUT}, {R('s', sO)}, {so} offen offset:{(k2 >> 1) * 64} {O.get('ofl', 'sc1')}".rstrip()
        return ins, st
    p0 = eend(6) + 5
    add("S", lambda: b.wait(lg=[("pr", 4, 3)], vm=[("xr", 0, 3)]), p0 - 1, p0, [rc[0], xldl[0]])
    for k2 in (0, 2):
        ins, st = fin(0, k2, False)
        for x in ins[:-3]:
            valu[p0].append(x)
            if len(valu[p0]) >= 2:
                p0 += 1
        valu[p0].extend(ins[-3:])
        add("V", lambda st=st: b.vm(st), p0 + 1, p0 + 2)
        p0 += 1

    b.wait(vm=[("W", 0, 3)])
    e("s_barrier")
    stamp()
    for f in pro[:4]:
        f()
    for jm in range(4):
        b.wait(vm=[("X", 0, 2 * jm + 1)])
        rd_x(0, jm)()
    for f in pro[4:]:
        f()
    ops.sort(key=lambda o: (o.pos, o.seq))
    head = 0
    live = []

    def run(o, n):
        for d in o.deps:
            if not d.done:
                run(d, n)
        k = len(b.out)
        o.fn()
        o.done = True
        o.at = n
        if o.pos > n and o in ops:
            assert o.kind == "S" or O.get("lax"), ("forced early", o.kind, o.pos, n, b.out[-1])
        return sum(1 for x in b.out[k:] if not x.endswith(":"))

    over = two = 0
    for n, (txt, lgt, vmt) in enumerate(slots):
        if n in (NM, NT, N2) or n in O.get("spos", ()):
            stamp()
        if txt is not None:
            assert b.issued(vmt, lgt), (n, txt)
            b.wait(vm=vmt, lg=lgt)
            e(txt)
        while head < len(ops) and ops[head].pos <= n:
            live.append(ops[head])
            head += 1
        live = [o for o in live if not o.done]
        live.sort(key=lambda o: (o.dead, o.seq))
        ready = lambda o: not o.done and all(d.done for d in o.deps)
        nxt = slots[n + 1] if n + 1 < len(slots) else (None, [], [])
        va = valu.pop(n, [])
        budget = 2 if txt is not None else 6
        if txt is not None and len(va) == 1 and cost(va[0]) == 1:
            budget = 1
        used = 0
        nmem = 0
        maxmem = O.get("maxmem", 1) if txt is not None and not NM + 32 <= n < NT else 9
        if nxt[0] is not None and b.issued(nxt[2], nxt[1]) and b.needs(nxt[2], nxt[1]):
            b.wait(vm=nxt[2], lg=nxt[1])
        else:
            while True:
                c = [o for o in live if o.kind == "S" and ready(o)]
                if not c:
                    break
                k = run(c[0], n)
                if k:
                    used += k - 1
                    break
        while True:
            c = [o for o in live if ready(o)]
            must = [o for o in live if not o.done and o.dead <= n + 1]
            if must:
                nmem += must[0].kind in "DV"
                used += run(must[0], n)
                continue
            if nmem >= maxmem:
                c = [o for o in c if o.kind not in "DV"]
            if used >= budget or not c:
                break
            mem = [o for o in c if o.kind in "DV"]
            if va and not mem:
                break
            nmem += bool(mem)
            used += run((mem or c)[0], n)
        two += nmem > 1 and n < NM
        over += max(0, used - budget) if n < NM else 0
        for x in va:
            e(x)
    for o in ops:
        if not o.done:
            run(o, NEND)
    assert not valu, list(valu)
    if O.get("verbose"):
        print("over budget in main:", over, "two mem:", two)
    stamp()

    b.wait(lg=[("pr", 5, 3)])
    e("s_nop 4")
    for k2 in (0, 2):
        b.wait(vm=[("xr", 1, k2 + 1)])
        ins, st = fin(1, k2, True)
        for x in ins:
            e(x)
        b.vm(st)
    if stamps:
        stamp()
        e("s_waitcnt vmcnt(0)")
        stamp()
        e("s_memrealtime s[98:99]")
        e("s_waitcnt lgkmcnt(0)")
        if "probe" in O:
            k = O["probe"]
            e(f"s_cmp_lg_u32 s2, {O.get('probewg', 100)}")
            e("s_cbranch_scc1 L_end")
            if k == -1:
                e(f"s_mov_b32 s{sA}, 0")
            elif k == -2:
                e(f"s_sub_u32 s{sA}, s98, s100")
                e(f"s_mul_i32 s{sA}, s{sA}, 10")
            else:
                e(f"s_sub_u32 s{sA}, s{sST + k + 1}, s{sST + k}")
            e(f"s_min_u32 s{sA}, s{sA}, 100000")
            e(f"s_add_u32 s{sA}, s{sA}, 10000")
            e("L_probe:")
            e("s_memrealtime s[98:99]")
            e("s_waitcnt lgkmcnt(0)")
            e("s_sub_u32 s98, s98, s100")
            e(f"s_cmp_lt_u32 s98, s{sA}")
            e("s_cbranch_scc1 L_probe")
            e("s_endpgm")
        e(f"s_mov_b32 s{sF + 2}, 0x100000")
        e(f"s_lshl2_add_u32 s{sA}, s2, s{sWV}")
        e(f"s_lshl_b32 s{sA}, s{sA}, 7")
        e(f"s_add_u32 s{sA}, s{sA}, {SOFF}")
        vals = [sST + i for i in range(nst[0])] + [100, 98]
        for i, r in enumerate(vals):
            e(f"v_mov_b32 v2, s{r}")
            e(f"buffer_store_dword v2, off, {R('s', sF)}, s{sA} offset:{4 * i}")
    e("s_endpgm")
    for x in slow:
        e(x)
    e("L_end:")
    e("s_endpgm")
    return b.out, nst[0]


HEADER = """; Fused SwiGLU FFN: out = (silu(x @ w_gate) * (x @ w_up)) @ w_down, one persistent launch.
; @launch grid=(256,1,1) block=(256,1,1) lds=163840
.amdgcn_target "amdgcn-amd-amdhsa--gfx950"
.text
.globl {k}
.p2align 8
.type {k},@function
{k}:
"""
FOOTER = """.section .rodata,"a"
.p2align 6
.amdhsa_kernel {k}
  .amdhsa_next_free_vgpr 512
  .amdhsa_next_free_sgpr 102
  .amdhsa_accum_offset 256
  .amdhsa_group_segment_fixed_size 0
  .amdhsa_kernarg_size 56
  .amdhsa_user_sgpr_count 2
  .amdhsa_user_sgpr_kernarg_segment_ptr 1
  .amdhsa_system_sgpr_workgroup_id_x 1
  .amdhsa_float_denorm_mode_32 3
.end_amdhsa_kernel
"""


def write(path, **kw):
    body, n = gen(**kw)
    with open(path, "w") as f:
        f.write(HEADER.format(k=KNAME))
        f.write("\n".join(x if x.endswith(":") else "    " + x for x in body) + "\n")
        f.write(FOOTER.format(k=KNAME))
    return n


if __name__ == "__main__":
    write(sys.argv[1] if len(sys.argv) > 1 else "standalone__swiglu_ffn__prompt.s")
```

```python
import sys
from collections import defaultdict

KNAME = "standalone__swiglu_ffn__prompt_kernel"
HOFF = 0x100000
FOFF = 0x0
XOFF = 0x1000000
SOFF = 0x80000


class B:
    def __init__(self):
        self.out = []
        self.vm_n = 0
        self.vm_tag = {}
        self.vm_done = 0
        self.lg_n = 0
        self.lg_tag = {}
        self.lg_done = 0

    def e(self, s):
        self.out.append(s)

    def vm(self, s, tag=None):
        if s.endswith(" lds") and " m0," in self.out[-1]:
            self.e("s_nop 0")
        self.e(s)
        self.vm_n += 1
        if tag is not None:
            self.vm_tag[tag] = self.vm_n

    def lg(self, s, tag=None):
        self.e(s)
        self.lg_n += 1
        if tag is not None:
            self.lg_tag[tag] = self.lg_n

    def issued(self, vm=(), lg=()):
        return all(t in self.vm_tag for t in vm) and all(t in self.lg_tag for t in lg)

    def needs(self, vm=(), lg=()):
        return (max([self.vm_tag[t] for t in vm], default=0) > self.vm_done or
                max([self.lg_tag[t] for t in lg], default=0) > self.lg_done)

    def wait(self, vm=(), lg=()):
        parts = []
        need = max([self.vm_tag[t] for t in vm], default=0)
        if need > self.vm_done:
            n = self.vm_n - need
            parts.append(f"vmcnt({min(n, 63)})")
            self.vm_done = need if n <= 63 else self.vm_n - 63
        need = max([self.lg_tag[t] for t in lg], default=0)
        if need > self.lg_done:
            n = self.lg_n - need
            parts.append(f"lgkmcnt({min(n, 15)})")
            self.lg_done = need if n <= 15 else self.lg_n - 15
        if parts:
            self.e("s_waitcnt " + " ".join(parts))

    def wait_all(self, vm=False, lg=False):
        parts = []
        if vm and self.vm_done < self.vm_n:
            parts.append("vmcnt(0)")
            self.vm_done = self.vm_n
        if lg and self.lg_done < self.lg_n:
            parts.append("lgkmcnt(0)")
            self.lg_done = self.lg_n
        if parts:
            self.e("s_waitcnt " + " ".join(parts))


class Op:
    __slots__ = ("kind", "fn", "pos", "dead", "deps", "done", "seq", "at", "setup")

    def __init__(self, kind, fn, pos, dead, deps, seq):
        self.kind, self.fn, self.pos, self.dead, self.deps, self.seq = kind, fn, pos, dead, deps, seq
        self.done = False
        self.at = None
        self.setup = False


def R(p, a, n=4):
    return f"{p}[{a}:{a + n - 1}]"


sX, sW, sD, sHS, sHL, sO, sF, sG = 8, 12, 16, 20, 24, 28, 32, 36
sWV = 40
sT0 = 41
sXQ = 48
sM0X, sM0W, sTI = 56, 57, 58
sHA, sHB, sHLA, sHLB = 59, 60, 61, 62
sFP, sFC, sCP, sNL2E = 63, 64, 65, 66
sSPIN = 67
sA, sB_ = 68, 69
sM0H, sXO, sXI, sXFO, sXFI = 0, 1, 41, 42, 43
sX0 = 6
sPM, sWO, sXO_ = 70, 72, 73
sTS = 74
sGR = 77
sRT = 92
sK = 80
sST = 78
vXD, vXR, vWD, vWR, vDD, vDR, vL16, vHL, vFP, vFV, vTMP, vWR2, vOUT = 1, 3, 5, 12, 13, 14, 18, 19, 20, 21, 22, 30, 31
ACC = 32
aXF, aWF, aDF = 0, 64, 88
RW = 6
RH = 8
TRC = (80, 82, 84, 86, 88, 90, 94, 96)
TDPOS = (300, 700, 760, 1150)
WST = 64 * 7168


def acc1(b, gu, jm):
    return ACC + 32 * b + 16 * gu + 4 * jm


def acc2(jl, nb):
    return (0, 16, 192, 208, 32, 48, 224, 240)[jl] + 4 * nb


def acc2f(jl):
    return "v" if jl & 2 else "a"


BEST = {'h0': 170, 'pf1': 700, 'g2d': 400, 'pf2': 900, 'xfd1': 50, 'wsp': 8, 'xpd1': 130, 'sg2': 250, 'sk': 150, 'dprio': 120,
        'fd4': 1000, 'sg1': 0, 'gw': 1.0, 'sg3': 250, 'pf4': 900, 'ssp0': 8, 'vgd': 165, 'dper': 138, 'nb2': 4, 'ssp1': 4, 'dlat': 80,
        'sg4': 150, 'xpf1': 30, 'pause': 30, 'fd3': 1200, 'lat': 600, 'pf3': 600, 'fd1': 850, 'vg': 70, 'npro': 5, 'vg2': 60,
        'vg1': 90, 'beta2i': 13, 'map2': 3, 'fd2': 1000, 'gm': 8, 'xpd0': 140}
BEST.update({'nb2': 2, 'e6': 44, 'sg4': 400, 'vg2': 20, 'perm': 'split4', 'chk': 1, 'miss': (), 'gh': 5.8, 'dx': 2, 'er0': 7, 'er': 4.6, 'er2': 3.5, 'fast': 0, 'cpos': ()})


def stage_orders(kind):
    def lead(r, n, d, start=1):
        o = list(range(16))
        for s in range(start, 16):
            if s % n == r:
                o.remove(s)
                o.insert(max(s - d, 0), s)
        return o
    if kind == "none":
        return [list(range(16))]
    if kind == "rot4":
        return [[(s & ~3) + ((s + r) & 3) for s in range(16)] for r in range(4)]
    if kind == "rot2":
        return [[(s & ~1) + ((s + r) & 1) for s in range(16)] for r in range(2)]
    if kind == "lead1":
        return [lead(r, 4, 1) for r in range(4)]
    if kind == "lead2":
        return [lead(r, 4, 2) for r in range(4)]
    if kind == "rot4lead1":
        return [[(s + r) & 3 for s in range(3)] + [x for x in lead(r, 4, 1, 4) if x not in [(s + r) & 3 for s in range(3)]] for r in range(4)]
    if kind == "lead1x":
        return [[(x + 8 * g) & 15 for x in lead(r, 4, 1)] for g in range(2) for r in range(4)]
    if kind == "trail0":
        return [lead(r, 4, 1) for r in range(4)] + [list(range(16))] * 4
    if kind == "trail1":
        return [lead(r, 4, 1) for r in range(4)] + [[15] + list(range(15))] * 4
    if kind == "trail1l":
        return [lead(r, 4, 1) for r in range(4)] + [[15] + [x for x in lead(r, 4, 1) if x != 15] for r in range(4)]
    if kind.startswith("split"):
        n = int(kind[5:])
        a = [[y for y in lead(r, 4, 1) if y < 16 - n] + list(range(16 - n, 16)) for r in range(4)]
        b_ = [[16 - n + y for y in lead(r, 4, 1) if y < n] + list(range(16 - n)) for r in range(4)]
        return a + b_
    if kind.startswith("spl2_"):
        n = int(kind[5:])
        a = [[y for y in lead(r, 4, 2) if y < 16 - n] + list(range(16 - n, 16)) for r in range(4)]
        b_ = [[16 - n + y for y in lead(r, 4, 2) if y < n] + list(range(16 - n)) for r in range(4)]
        return a + b_
    if kind.startswith("spl0_"):
        n = int(kind[5:])
        return [list(range(16))] * 4 + [list(range(16 - n, 16)) + list(range(16 - n))] * 4
    if kind == "rtrail":
        return [[(s & ~3) + ((s + r) & 3) for s in range(16)] for r in range(4)] + [[15] + list(range(15))] * 4
    if kind == "nonex":
        return [[(x + 8 * g) & 15 for x in range(16)] for g in range(2) for r in range(4)]
    if kind == "lead1h":
        return [[(x + 8 * g) & 15 for x in [y for y in lead(r, 4, 1) if y < 8] + list(range(8, 16))] for g in range(2) for r in range(4)]
    if kind == "rot4h":
        return [[(x + 8 * g) & 15 for x in [(s & ~3) + ((s + r) & 3) for s in range(8)] + list(range(8, 16))] for g in range(2) for r in range(4)]
    if kind == "rot4l":
        return [[(x + 8 * g) & 15 for x in [(s & ~3) + ((s + r) & 3) for s in range(8)] + [y for y in lead(r, 4, 1) if y >= 8]] for g in range(2) for r in range(4)]
    if kind == "lead1y":
        return [[x ^ (4 * g) for x in lead(r, 4, 1)] for g in range(2) for r in range(4)]
    if kind == "lead1z":
        return [[x ^ (2 * g) for x in lead(r, 4, 1)] for g in range(2) for r in range(4)]
    if kind == "lead1r":
        return [[15 - x if g else x for x in lead(r, 4, 1)] for g in range(2) for r in range(4)]
    if kind == "lead2x":
        return [[(x + 8 * g) & 15 for x in lead(r, 4, 2)] for g in range(2) for r in range(4)]
    if kind == "lead21x":
        return [[(x + 8 * g) & 15 for x in lead(r & 1, 2, 1)] for g in range(2) for r in range(4)]
    if kind == "rot4x":
        return [[(((s & ~3) + ((s + r) & 3)) + 8 * g) & 15 for s in range(16)] for g in range(2) for r in range(4)]
    if kind == "rot4s":
        a = [[(s & ~3) + ((s + r) & 3) for s in range(16)] for r in range(4)]
        b_ = [[(s + r) & 1 for s in range(2)] + [2 + (s & ~3) + ((s + r) & 3) for s in range(12)] + [14 + ((s + r) & 1) for s in range(2)] for r in range(4)]
        return a + b_


def gen(stamps=False, **O):
    O = dict(BEST, **O)
    b = B()
    e = b.e
    nst = [0]

    def stamp(last=False):
        if stamps and (stamps != 2 or last):
            i = sST + nst[0]
            i += 2 * (i >= sRT)
            assert i < 98
            nst[0] += 1
            b.wait_all(lg=True)
            e("s_memtime s[98:99]")
            e("s_waitcnt lgkmcnt(0)")
            e(f"s_mov_b32 s{i}, s98")

    SIG = [65536, 131072, 94208]
    sig = lambda s: SIG[s % 3]
    slow = []

    if stamps:
        e("s_memrealtime s[100:101]")
        e(f"s_memtime s[{sST}:{sST + 1}]")
        nst[0] += 1
    e(f"s_load_dwordx8 s[{sK}:{sK + 7}], s[0:1], 0")
    e(f"s_load_dwordx4 s[{sK + 8}:{sK + 11}], s[0:1], 32")
    e(f"s_load_dwordx2 s[{sF}:{sF + 1}], s[0:1], 48")
    e("s_cmp_ge_u32 s2, 256")
    e("s_cbranch_scc1 L_end")
    e("v_lshrrev_b32 v2, 6, v0")
    e("v_and_b32 v0, 63, v0")
    e(f"v_readfirstlane_b32 s{sWV}, v2")
    e("s_and_b32 s41, s2, 1")
    e("s_bfe_u32 s42, s2, 0x20001")
    e("s_bfe_u32 s43, s2, 0x20003")
    e("s_lshr_b32 s44, s2, 5")
    e("s_xor_b32 s45, s41, s42")
    e("s_and_b32 s45, s45, 1")
    e("s_lshl2_add_u32 s45, s45, s43")
    sMT, sJ, sMB, sNB = 45, 46, 47, 3
    e("v_lshrrev_b32 v25, 3, v0")
    e("v_lshrrev_b32 v26, 4, v0")
    e("v_and_b32 v27, 7, v0")
    e("v_xor_b32 v23, v27, v26")
    e("v_lshlrev_b32 v25, 11, v25")
    e(f"v_lshl_add_u32 v{vXD}, v23, 4, v25")
    e(f"v_xor_b32 v{vXD + 1}, 64, v{vXD}")
    perms = stage_orders(O["perm"])
    assert len(perms) == 8
    e(f"s_add_u32 s{sTI}, s43, s44")
    e(f"s_and_b32 s{sTI}, s{sTI}, 3")
    e(f"s_lshl2_add_u32 s{sTI}, s41, s{sTI}")
    e(f"s_lshl_b32 s{sA}, s{sTI}, 2")
    e(f"s_lshr_b32 s{sWO}, {sum(pm[0] << (4 * k) for k, pm in enumerate(perms)):#x}, s{sA}")
    e(f"s_and_b32 s{sWO}, s{sWO}, 15")
    e(f"s_lshl_b32 s{sXO_}, s{sWO}, 7")
    e(f"s_lshl2_add_u32 s{sB_}, s{sMT}, s{sWV}")
    e(f"s_lshl_b32 s{sB_}, s{sB_}, 17")
    e(f"s_mov_b32 s{sX + 2}, {63 * 2048 + 128}")
    e(f"s_mov_b32 s{sX + 3}, 0x20000")
    e(f"s_lshl_b32 s{sM0X}, s{sWV}, 14")
    e(f"s_mov_b32 m0, s{sM0X}")
    for q in range(4):
        e(f"s_mov_b32 s{sXQ + q}, {q * 16384 - (q & 3) * 1024}")
    nib = lambda d, s_: f"s_bfe_u32 s{d}, s{sPM + (s_ >> 3)}, {0x40000 + 4 * (s_ & 7):#x}"

    def w_off(q, base):
        if q:
            e(f"v_add_u32 v22, {64 * 4682}, v22")
        e("v_lshrrev_b32 v23, 16, v22")
        e("v_and_b32 v24, 3, v23")
        e(f"v_mad_u32_u24 v23, v23, s{sHA}, v{base}")
        e(f"v_mad_i32_i24 v{vWD + q}, v24, s{sHB}, v23")

    def w_setup1():
        e(f"v_lshlrev_b32 v{vL16}, 4, v0")
        e("v_mul_u32_u24 v22, 4682, v0")
        e(f"s_movk_i32 s{sHA}, 14112")
        e(f"s_movk_i32 s{sHB}, -7168")
        for q in range(4):
            w_off(q, vL16)
        e("s_lshl3_add_u32 s46, s42, s44")
        e(f"s_mul_i32 s{sWO}, s{sWO}, {WST}")
        e(f"s_lshr_b32 s{sA}, s{sWV}, 1")
        e(f"s_mul_i32 s{sA}, s{sA}, {4 * 7168}")
        e(f"s_mul_i32 s{sHLA}, s{sJ}, 224")
        e(f"s_add_u32 s{sA}, s{sA}, s{sHLA}")
        e(f"s_mov_b32 s{sW + 2}, {15 * WST + 60 * 7168}")
        e(f"s_mov_b32 s{sW + 3}, 0x20000")
        e(f"s_mul_i32 s{sM0W}, s{sWV}, 7168")

    def w_setup2():
        e(f"s_bitcmp1_b32 s{sWV}, 0")
        e(f"s_cselect_b32 s{sW}, s{sK + 4}, s{sK + 2}")
        e(f"s_cselect_b32 s{sW + 1}, s{sK + 5}, s{sK + 3}")
        e(f"s_add_u32 s{sW}, s{sW}, s{sA}")
        e(f"s_addc_u32 s{sW + 1}, s{sW + 1}, 0")

    def code_touch():
        e("; ---- bring this kernel's code into L2 ahead of the instruction fetch (4 lines per wave)")
        e("s_getpc_b64 s[4:5]")
        e("L_pc:")
        e(f"s_lshr_b32 s{sHLB}, s2, 3")
        e(f"s_lshl2_add_u32 s{sHLB}, s{sHLB}, s{sWV}")
        e(f"s_lshl_b32 s{sHLB}, s{sHLB}, 9")
        e(f"v_min_u32 v{vOUT}, 3, v0")
        e(f"v_lshl_add_u32 v{vOUT}, v{vOUT}, 7, s{sHLB}")
        e(f"v_min_u32 v{vOUT}, L_end-L_pc, v{vOUT}")
        b.vm(f"global_load_dword v{vFV}, v{vOUT}, s[4:5]")
    fast = O.get("fast", 1)
    if fast in (0, 2):
        code_touch()
    if fast == 0:
        w_setup1()
    e("s_waitcnt lgkmcnt(0)")
    stamp()

    m0_state = [(sM0X, 0)]

    def m0_ops(sreg, off):
        if m0_state[0] == (sreg, off):
            return []
        m0_state[0] = (sreg, off)
        return [[f"s_add_u32 m0, s{sreg}, {off}" if off else f"s_mov_b32 m0, s{sreg}"]]

    def pre_w(s, q):
        g = m0_ops(sM0W, sig(s) + (q >> 2) * 4096)
        if q == 0 and s:
            g += [[nib(sWO, s)], [f"s_mul_i32 s{sWO}, s{sWO}, {WST}"]]
        return g

    def dma_w(s, q):
        if O.get("now") and s >= 3:
            b.vm_tag["W", s, q] = 0
            return
        b.vm(f"buffer_load_dwordx4 v{vWD + q}, {R('s', sW)}, s{sWO} offen offset:{(q & 3) * 1024} {O.get('wfl', '')} lds", ("W", s, q))

    def pre_x(s, q):
        g = m0_ops(sM0X, (2 * s + (q >> 2)) % 3 * 4096)
        if q == 0:
            if s:
                g += [[nib(sXO_, s)], [f"s_lshl_b32 s{sXO_}, s{sXO_}, 7"]]
            g.append([f"s_add_u32 s{sX}, s{sX0}, s{sXO_}", f"s_addc_u32 s{sX + 1}, s{sX0 + 1}, 0"])
        return g

    def dma_x(s, q):
        if O.get("nox") and s >= 2:
            b.vm_tag["X", s, q] = 0
            return
        b.vm(f"buffer_load_dwordx4 v{vXD + (q & 1)}, {R('s', sX)}, s{sXQ + q} offen offset:{(q & 3) * 1024} {O.get('xfl', '')} lds", ("X", s, q))

    def now(groups):
        for g in groups:
            for x in g:
                e(x)

    e(f"s_add_u32 s{sX0}, s{sK}, s{sB_}")
    e(f"s_addc_u32 s{sX0 + 1}, s{sK + 1}, 0")
    for q in range(4):
        now(pre_x(0, q))
        dma_x(0, q)
    if fast == 1:
        code_touch()
    if fast:
        w_setup1()
    w_setup2()
    for q in range(4):
        now(pre_w(0, q))
        dma_w(0, q)
    for q in range(4, 8):
        e(f"s_mov_b32 s{sXQ + q}, {q * 16384 - (q & 3) * 1024}")
    nx0 = 8
    for q in range(4, 8):
        now(pre_x(0, q))
        dma_x(0, q)
    for r_, pm in enumerate(perms):
        assert sorted(pm) == list(range(16))
        lo = sum(v << (4 * k) for k, v in enumerate(pm[:8]))
        hi = sum(v << (4 * k) for k, v in enumerate(pm[8:]))
        if r_ == 0:
            e(f"s_mov_b32 s{sPM}, {lo:#x}")
            e(f"s_mov_b32 s{sPM + 1}, {hi:#x}")
        else:
            e(f"s_cmp_eq_u32 s{sTI}, {r_}")
            e(f"s_cselect_b32 s{sPM}, {lo:#x}, s{sPM}")
            e(f"s_cselect_b32 s{sPM + 1}, {hi:#x}, s{sPM + 1}")
    e(f"v_add_u32 v28, 4096, v{vL16}")
    for q in range(4, 7):
        w_off(q, 28)
    pro_items = [("W", 0, q) for q in range(4, 7)] + [("X", 1, q) for q in range(4)] + [("W", 1, q) for q in range(7)]
    npro = O.get("npro", 3)

    map2 = O.get("map2", 3)
    if map2 == 0:
        e("s_lshl2_add_u32 s47, s42, s43")
        e(f"s_mov_b32 s{sA}, s44")
    elif map2 == 1:
        e(f"s_lshr_b32 s{sA}, s42, 1")
        e(f"s_lshl3_add_u32 s47, s{sA}, s44")
        e(f"s_and_b32 s{sA}, s42, 1")
        e(f"s_lshl2_add_u32 s{sA}, s{sA}, s43")
    elif map2 in (2, 3):
        if map2 == 2:
            e(f"s_and_b32 s{sA}, s2, 3")
            e(f"s_lshl2_add_u32 s47, s{sA}, s43")
            e(f"s_mov_b32 s{sA}, s44")
        else:
            e("s_lshl3_add_u32 s47, s41, s44")
            e(f"s_and_b32 s{sA}, s42, 1")
            e(f"s_lshl2_add_u32 s{sA}, s{sA}, s43")
        e("s_lshr_b32 s41, s42, 1")
        e("s_xor_b32 s41, s41, 1")
    else:
        e("s_xor_b32 s41, s41, 1")
        if map2 == 4:
            e(f"s_and_b32 s{sA}, s42, 1")
            e(f"s_lshl1_add_u32 s{sA}, s41, s{sA}")
            e(f"s_lshl2_add_u32 s47, s{sA}, s43")
            e(f"s_mov_b32 s{sA}, s44")
        else:
            e("s_lshl3_add_u32 s47, s41, s44")
            e(f"s_and_b32 s{sA}, s42, 1")
            e(f"s_lshl2_add_u32 s{sA}, s{sA}, s43")
        e("s_lshr_b32 s41, s42, 1")
    e(f"s_and_b32 s{sB_}, s{sWV}, 1")
    e(f"s_lshl1_add_u32 s3, s{sA}, s{sB_}")
    e(f"s_lshr_b32 s{sA}, s{sWV}, 1")
    e(f"s_lshl1_add_u32 s{sSPIN}, s41, s{sA}")
    e("s_lshr_b32 s42, s46, 3")
    e("s_and_b32 s44, s46, 7")
    e(f"s_lshl_b32 s{sM0H}, s{sA}, 14")
    if O.get("dx"):
        m_ = {1: f"s_and_b32 s{sRT}, s47, 3", 2: f"s_bfe_u32 s{sRT}, s47, 0x20002", 3: f"s_lshr_b32 s{sRT}, s47, 3"}[O["dx"]]
        e(m_)
        for i in range(4):
            e(f"s_xor_b32 s{sTS + i}, s{sRT}, {i}")
            e(f"s_mul_i32 s{sTS + i}, s{sTS + i}, {112 * 2048}")
        e(f"s_xor_b32 s{sHLA}, s{sRT}, s{sB_}")
        e(f"s_and_b32 s{sHLA}, s{sHLA}, 1")
        e(f"s_lshl_b32 s{sHLA}, s{sHLA}, 10")
        e(f"v_add_u32 v29, s{sHLA}, v{vL16}")
        e(f"s_and_b32 s{sRT}, s{sRT}, 2")
        e(f"s_lshl_b32 s{sRT}, s{sRT}, 13")
        e(f"s_xor_b32 s{sRT + 1}, s{sRT}, 16384")
    e(f"s_lshl_b32 s{sB_}, s{sB_}, 10")
    if not O.get("dx"):
        e(f"v_add_u32 v29, s{sB_}, v{vL16}")
    e(f"v_add_u32 v28, s{sM0H}, v{vL16}")
    e(f"s_add_u32 s{sM0H}, s{sM0H}, s{sB_}")
    sWQ = sSPIN
    e("v_lshlrev_b32 v23, 1, v26")
    e("v_xor_b32 v23, v27, v23")
    e(f"v_lshl_add_u32 v{vDD}, v23, 4, v25")
    e("v_and_b32 v22, 15, v0")
    e("v_lshrrev_b32 v24, 1, v22")
    e("v_xor_b32 v24, v24, v26")
    e("v_lshlrev_b32 v24, 4, v24")
    e("v_lshl_add_u32 v24, v22, 7, v24")
    e(f"v_add_u32 v{vXR}, s{sM0X}, v24")
    e(f"v_xor_b32 v{vXR + 1}, 64, v{vXR}")
    e(f"v_lshlrev_b32 v{vFP}, 2, v22")
    e("v_lshrrev_b32 v24, 2, v0")
    e("v_and_b32 v25, 3, v0")
    e("v_mul_u32_u24 v26, 224, v24")
    e("v_lshl_add_u32 v26, v25, 3, v26")
    e(f"v_add_u32 v{vWR}, 65536, v26")
    e(f"v_add_u32 v{vWR2}, 131072, v26")
    e("v_lshlrev_b32 v26, 7, v24")
    e("v_lshl_add_u32 v26, v25, 3, v26")
    e(f"v_add_u32 v26, s{sM0X}, v26")
    e("v_bfe_u32 v27, v0, 3, 2")
    e(f"v_lshl_add_u32 v{vDR}, v27, 5, v26")
    for nb in range(1, 4):
        e(f"v_xor_b32 v{vDR + nb}, {32 * nb}, v{vDR}")
    e("v_lshrrev_b32 v24, 5, v0")
    e("v_and_b32 v25, 31, v0")
    e("v_lshlrev_b32 v25, 4, v25")
    e(f"v_lshl_add_u32 v{vHL}, v24, 10, v25")
    e(f"s_mov_b32 s{sF + 2}, 8192")
    e(f"s_mov_b32 s{sF + 3}, 0x20000")
    e(f"s_lshr_b32 s{sA}, s{sWV}, 1")
    e(f"s_lshl1_add_u32 s{sA}, s{sMT}, s{sA}")
    e(f"s_lshl2_add_u32 s{sB_}, s{sA}, s42")
    e(f"s_lshl_b32 s{sFP}, s{sB_}, 7")
    e(f"s_and_b32 s{sHA}, s{sWV}, 1")
    e(f"s_lshl1_add_u32 s{sHB}, s44, s{sHA}")
    e(f"s_lshl2_add_u32 s{sFP}, s{sHB}, s{sFP}")
    e("s_cmp_eq_u32 s2, 0")
    e("s_cbranch_scc1 L_clear")
    e("L_cleared:")
    slow.append("L_clear:")
    slow.extend(f"v_mov_b32 v{24 + x}, 0" for x in range(4))
    slow.extend([f"s_lshl_b32 s{sA}, s{sWV}, 11",
                 f"buffer_store_dwordx4 v[24:27], v{vL16}, {R('s', sF)}, s{sA} offen sc1",
                 f"buffer_store_dwordx4 v[24:27], v{vL16}, {R('s', sF)}, s{sA} offen offset:1024 sc1",
                 "s_branch L_cleared"])
    if O.get("wt"):
        e(f"s_and_b32 s{sA}, s46, 1")
        e(f"s_and_b32 s{sB_}, s45, 3")
        e(f"s_lshl2_add_u32 s{sB_}, s{sA}, s{sB_}")
        e(f"s_lshl_b32 s{sB_}, s{sB_}, 2")
        e(f"s_lshr_b32 s{sHLA}, s{sWV}, 1")
        e(f"s_add_u32 s{sB_}, s{sB_}, s{sHLA}")
        e(f"s_mul_i32 s{sB_}, s{sB_}, {4 * 7168}")
        e(f"s_mul_i32 s{sA}, s{sA}, 672")
        e(f"s_sub_u32 s{sB_}, s{sB_}, s{sA}")
        e(f"s_add_u32 s{sB_}, s{sB_}, 256")
        e("v_min_u32 v24, 23, v0")
        e("v_mul_u32_u24 v25, 0x5556, v24")
        e("v_lshrrev_b32 v25, 16, v25")
        e(f"v_mul_u32_u24 v26, {7168 - 384}, v25")
        e("v_lshl_add_u32 v26, v24, 7, v26")
        e(f"v_add_u32 v26, s{sB_}, v26")
        e(f"s_add_u32 s{sA}, s46, 1")
        e(f"s_bitcmp1_b32 s{sA}, 1")
        e(f"s_cselect_b32 s{sA}, 0, -1")
        e(f"v_and_b32 v26, s{sA}, v26")
        e(f"s_and_b32 s{sTS + 1}, s{sA}, {2 * WST}")
        e(f"s_mul_i32 s{sTS + 2}, s{sGR}, {(16 - O['wt']) // 2}")
    if O["cpos"]:
        e("s_mov_b32 s46, s4")
        e("s_mov_b32 s45, s5")
    if O.get("touchd", 1):
        e(f"s_lshl2_add_u32 s{sA}, s2, s{sWV}")
        if O.get("tall"):
            e(f"s_mul_i32 s{sA}, s{sA}, {56 * 128}")
        elif O.get("tlite"):
            e(f"s_add_u32 s{sB_}, s44, 1")
            e(f"s_bfe_u32 s{sB_}, s{sB_}, 0x10001")
            e(f"s_mov_b32 s{sHLA}, s{sB_}")
            e(f"s_lshr_b32 s{sB_}, s2, 6")
            e(f"s_and_b32 s{sA}, s{sA}, 127")
            e(f"s_lshl_b32 s{sB_}, s{sB_}, 7")
            e(f"s_add_u32 s{sA}, s{sA}, s{sB_}")
            e(f"s_lshr_b32 s{sB_}, s{sA}, 4")
            e(f"s_mul_i32 s{sB_}, s{sB_}, 28")
            e(f"s_and_b32 s{sA}, s{sA}, 15")
            e(f"s_add_u32 s{sA}, s{sA}, s{sB_}")
            e(f"s_add_u32 s{sA}, s{sA}, 12")
            e(f"s_lshl_b32 s{sA}, s{sA}, 13")
        else:
            e(f"s_lshr_b32 s{sB_}, s{sA}, 5")
            e(f"s_mul_i32 s{sB_}, s{sB_}, 56")
            e(f"s_and_b32 s{sA}, s{sA}, 31")
            e(f"s_add_u32 s{sA}, s{sA}, s{sB_}")
            e(f"s_add_u32 s{sA}, s{sA}, 24")
            e(f"s_lshl_b32 s{sA}, s{sA}, 12")
        TL = (56 if O.get("tall") else 64 if O.get("tlite") else 32) // len(O.get("tdpos", TDPOS))
        e(f"v_min_u32 v22, {TL - 1}, v0")
        if O.get("tlite"):
            e(f"s_cmp_eq_u32 s{sHLA}, 0")
            e(f"s_cselect_b32 s{sA}, s{sA}, 0")
            e(f"s_cselect_b32 s{sTS}, {TL * 128}, 0")
            e(f"s_cselect_b32 s{sB_}, -1, 0")
            e(f"v_and_b32 v22, s{sB_}, v22")
        e(f"v_lshl_add_u32 v22, v22, 7, s{sA}")
        e(f"s_mov_b32 s4, s{sK + 6}")
        e(f"s_mov_b32 s5, s{sK + 7}")
    e(f"s_mul_i32 s{sA}, s{sWQ}, {896 * 2048}")
    e(f"s_lshl_b32 s{sB_}, s{sNB}, 7")
    e(f"s_add_u32 s{sA}, s{sA}, s{sB_}")
    e(f"s_add_u32 s{sD}, s{sK + 6}, s{sA}")
    e(f"s_addc_u32 s{sD + 1}, s{sK + 7}, 0")
    e(f"s_mov_b32 s{sD + 2}, {895 * 2048 + 128}")
    e(f"s_mov_b32 s{sD + 3}, 0x20000")
    e(f"s_lshr_b32 s{sA}, s{sFP}, 7")
    e(f"s_mul_i32 s{sA}, s{sA}, {28 * 8192}")
    e(f"s_add_u32 s{sA}, s{sA}, {HOFF}")
    e(f"s_add_u32 s{sHS}, s{sF}, s{sA}")
    e(f"s_addc_u32 s{sHS + 1}, s{sF + 1}, 0")
    e(f"s_mov_b32 s{sHS + 2}, {28 * 8192}")
    e(f"s_mov_b32 s{sHS + 3}, 0x20000")
    e(f"s_lshl2_add_u32 s{sA}, s{sMB}, s{sWQ}")
    e(f"s_lshl_b32 s{sFC}, s{sA}, 7")
    e(f"s_mul_i32 s{sA}, s{sA}, {28 * 8192}")
    e(f"s_add_u32 s{sA}, s{sA}, {HOFF - (2048 if O.get('dx') else 0)}")
    e(f"s_add_u32 s{sHL}, s{sF}, s{sA}")
    e(f"s_addc_u32 s{sHL + 1}, s{sF + 1}, 0")
    e(f"s_mov_b32 s{sHL + 2}, {28 * 8192 + 2048}")
    e(f"s_mov_b32 s{sHL + 3}, 0x20000")
    e(f"s_lshl_b32 s{sA}, s{sHA}, 1")
    e(f"s_xor_b32 s{sA}, s{sA}, s42")
    e(f"s_xor_b32 s{sA}, s{sA}, 3")
    e(f"s_xor_b32 s{sB_}, s{sA}, 1")
    e(f"s_lshl_b32 s{sA}, s{sA}, 11")
    e(f"s_lshl_b32 s{sB_}, s{sB_}, 11")
    e(f"s_add_u32 s{sHA}, s44, 4")
    e(f"s_lshl_b32 s{sHA}, s{sHA}, 13")
    e(f"s_add_u32 s{sHB}, s{sHA}, s{sB_}")
    e(f"s_add_u32 s{sHA}, s{sHA}, s{sA}")
    e(f"s_lshr_b32 s{sHLA}, s44, 1")
    e(f"s_lshl_b32 s{sHLA}, s{sHLA}, 13")
    e(f"s_and_b32 s{sHLB}, s44, 1")
    e(f"s_lshl_b32 s{sHLB}, s{sHLB}, 9")
    e(f"s_add_u32 s{sHLA}, s{sHLA}, s{sHLB}")
    e(f"s_add_u32 s{sHLB}, s{sHLA}, s{sB_}")
    e(f"s_add_u32 s{sHLA}, s{sHLA}, s{sA}")
    e(f"s_lshl2_add_u32 s{sA}, s{sMB}, s{sWQ}")
    e(f"s_lshl_b32 s{sA}, s{sA}, 16")
    e(f"s_lshl_b32 s{sB_}, s{sNB}, 7")
    e(f"s_add_u32 s{sA}, s{sA}, s{sB_}")
    e(f"s_add_u32 s{sO}, s{sK + 8}, s{sA}")
    e(f"s_addc_u32 s{sO + 1}, s{sK + 9}, 0")
    e(f"s_mov_b32 s{sO + 2}, {31 * 2048 + 128}")
    e(f"s_mov_b32 s{sO + 3}, 0x20000")
    e(f"s_mov_b32 s{sG}, s{sK + 10}")
    e(f"s_mov_b32 s{sG + 1}, s{sK + 11}")
    e(f"s_mov_b32 s{sG + 2}, 256")
    e(f"s_mov_b32 s{sG + 3}, 0x20000")
    e(f"s_or_b32 s{sCP}, s2, s{sWV}")
    e(f"s_mov_b32 s{sNL2E}, 0xbfb8aa3b")
    if O["cpos"]:
        e("s_mov_b32 s47, s45")
    e(f"s_lshl2_add_u32 s{sXFO}, s{sNB}, s{sFC}")
    e(f"s_add_u32 s{sXFO}, s{sXFO}, 64")
    e(f"s_xor_b32 s{sXFI}, s{sXFO}, 256")
    e(f"s_lshr_b32 s{sA}, s{sFC}, 3")
    e(f"s_add_u32 s{sA}, s{sA}, s{sNB}")
    e(f"s_lshl_b32 s{sXO}, s{sA}, 13")
    e(f"s_xor_b32 s{sXI}, s{sXO}, {32 << 13}")

    def warm():
        e("; ---- instruction prefetch stops at 4 KiB boundaries: while the first loads are under way every wave follows a short chain")
        e("; ---- of branches (L_padN, taken only while vcc != 0) through the first line of the code pages")
        e("s_mov_b64 vcc, 1")
        for w_ in range(3):
            e(f"s_cmp_eq_u32 s{sWV}, {w_}")
            e(f"s_cbranch_scc1 L_pad{w_}")
        e("s_branch L_pad3")
        e("L_warm:")
        e("s_mov_b64 vcc, 0")
    rest = [("X", 0, q) for q in range(nx0, 8)] + pro_items[:npro]
    wat = min(O.get("wat", 0), len(rest))
    for n_, (k, s_, q) in enumerate(rest + [(None, 0, 0)]):
        if n_ == wat and O.get("pads", 1):
            warm()
        if k:
            now((pre_w if k == "W" else pre_x)(s_, q))
            (dma_w if k == "W" else dma_x)(s_, q)
    if O.get("pads", 1):
        e("s_branch L_main")
        e("@SLOW@")
        e(".p2align 12")
        e("L_main:")

    ops = []

    def add(kind, fn, pos, dead=None, deps=()):
        if isinstance(fn, (list, tuple)):
            g = list(fn)
            fn = lambda g=g: [e(x) for x in g]
        o = Op(kind, fn, pos, pos + 12 if dead is None else dead, [d for d in deps if d is not None], len(ops))
        ops.append(o)
        return o

    slots = []
    valu = defaultdict(list)
    NM = 28 * 56
    NT = NM + 224
    NE = 0
    N2 = NT + NE
    xset = lambda t: t & 3
    WR = (64, 68, 72, 76, 80, 84, 248, 252)
    wreg = lambda F: WR[F % 8]

    def rd_w(F, t, i, half):
        s, p, gu, blk = t >> 1, t & 1, i & 1, i >> 1
        off = sig(s) + (gu + 2 * half) * 7168 + p * 3584 + blk * 32
        v, off = (vWR, off - 65536) if off < 131072 else (vWR2, off - 131072)
        r = wreg(F) + 2 * half
        if O.get("skipw") and half == 0 and 14 <= F < 28 * 14:
            return lambda: b.lg_tag.__setitem__(("wf", F, half), 0)
        return lambda: b.lg(f"ds_read_b64_tr_b16 {R('a', r, 2)}, v{v} offset:{off}", ("wf", F, half))

    def rd_x(t, jm):
        s, p = t >> 1, t & 1
        return lambda: b.lg(f"ds_read_b128 {R('a', aXF + 16 * xset(t) + 4 * jm)}, v{vXR + p} offset:{(2 * s + (jm >> 1)) % 3 * 4096 + (jm & 1) * 2048}", ("xf", t, jm))

    beta = lambda t: 56 * t + O.get("beta", 42)
    nb2 = O.get("nb2", 4)
    groups = []
    for s in range(14):
        if 2 * s < nb2:
            groups += [[(t, i)] for t in (2 * s, 2 * s + 1) for i in range(14)]
        else:
            groups += [[(2 * s, i), (2 * s + 1, i)] for i in range(14)]
    groups += [[(t, gu), (t + 1, gu)] for t in (28, 30) for gu in range(2)]
    groups += [[(28 + tt, i) for tt in range(4)] for i in range(2, 14)]
    frs = [f for g in groups for f in g]
    fuse, luse, adone = {}, {}, {}
    started = set()
    F0 = nchain = 0
    for gi, g in enumerate(groups):
        for jm in (range(3, -1, -1) if gi & 1 else range(4)):
            for k in (range(len(g) - 1, -1, -1) if nchain & 1 else range(len(g))):
                t, i = g[k]
                F = F0 + k
                fuse.setdefault(F, len(slots))
                luse[F] = len(slots)
                d = R("v", acc1(i >> 1, i & 1, jm))
                c = d if (i, jm) in started else "0"
                started.add((i, jm))
                adone[i, jm] = len(slots)
                slots.append((f"v_mfma_f32_16x16x32_bf16 {d}, {R('a', wreg(F))}, {R('a', aXF + 16 * xset(t) + 4 * jm)}, {c}",
                              [("wf", F, 1), ("xf", t, jm)], []))
            nchain += 1
        F0 += len(g)
    pro = []
    bar = {}
    prev = None
    barw = {}
    LA = O.get("la", 20)
    pos = -100
    gate = None
    for F, (t, i) in enumerate(frs):
        pos = max(pos + 2, fuse[F] - LA, luse.get(F - 8, -100) + 1, gate.pos + 1 if gate else -100)
        for half in range(2):
            if fuse[F] < 12:
                pro.append(rd_w(F, t, i, half))
            else:
                prev = add("D", rd_w(F, t, i, half), max(pos, 0) + half, fuse[F] - 4, [prev, gate])
        gate = None
        if F < 28 * 14 and F % 14 == 13 and (F // 14 & 1 or F // 14 < nb2):
            t = F // 14
            s, p = (t + 1) >> 1, (t + 1) & 1
            need = [("W", s, q) for q in (range(4) if p == 0 and t + 1 < nb2 else range(7))]
            if t == 27:
                need = [("W", s2, q) for s2 in (14, 15) for q in range(7)]
            assert pos + 5 <= beta(t), (t, pos)
            barw[t] = add("S", lambda need=need, F=F: b.wait(vm=need, lg=[("wf", F, 1)]), beta(t), beta(t) + 1, [prev])
            gate = bar[t] = add("S", ["s_barrier" if not O.get("nobar") or t < 4 or t == 27 else "s_nop 0"], beta(t) + 1, beta(t) + 2, [barw[t]])
    xpos = {}
    xrd = {}
    xw = {}
    for t in range(1 if nb2 else 2, 32):
        for jm in range(4):
            s, a = t >> 1, jm >> 1
            k = 2 * (jm & 1) + (t & 1)
            if t == 1:
                pos = 2 + 3 * jm
            elif s == 1:
                pos = 56 + (18, 34)[a] + k
            elif s == 15:
                pos = NM + 4 * a + k
            else:
                pos = 56 * (2 * (s - 1) + a) + 34 + k
            xpos[t, jm] = pos
            if t > 1 and (s, a) not in xw:
                xw[s, a] = add("S", lambda s=s, a=a: b.wait(vm=[("X", s, 4 * a + 3)]), pos - 1, pos + 4)
            xrd[t, jm] = add("D", rd_x(t, jm), pos, pos + 5, [xw.get((s, a))])
    xlast = lambda s, a: max(((t, jm) for t in (2 * s, 2 * s + 1) for jm in (2 * a, 2 * a + 1) if (t, jm) in xpos), key=lambda x: xpos[x])
    xall = lambda s, a: [(t, jm) for t in (2 * s, 2 * s + 1) for jm in (2 * a, 2 * a + 1)]

    usets = ([("a", aDF + 16 * i) for i in range(10)] + [("v", r) for r in (48, 32, 80, 96, 64, 144, 160, 176, 128, 112)])
    NS = len(usets)
    ureg = lambda u: usets[u % NS]
    unit_lds = lambda slot: slot * 4096

    def unit_row(u, q):
        if u < 4:
            return 112 * (2 * u + (q & 1)) + 8 * (q >> 1)
        return 112 * ((u - 4) & 7) + 16 + 32 * ((u - 4) >> 3) + 8 * q

    def pre_d(u, sl, q):
        if O.get("dx"):
            c_ = unit_row(u & ~3, q) * 2048 - q * 1024
            return m0_ops(sM0X, unit_lds(sl)) + [[f"{'s_lshl1_add_u32' if u < 4 else 's_add_u32'} s{sA}, s{sTS + (u & 3)}, {c_}"]]
        return m0_ops(sM0X, unit_lds(sl)) + [[f"s_mov_b32 s{sA}, {unit_row(u, q) * 2048 - q * 1024}"]]

    def dma_d(u, q):
        if u >= O.get("nod", 99):
            b.vm_tag["D", u, q] = 0
            return
        b.vm(f"buffer_load_dwordx4 v{vDD}, {R('s', sD)}, s{sA} offen offset:{q * 1024} {O.get('dfl', '')} lds", ("D", u, q))

    def rd_d(u, slot, nb, half):
        off = unit_lds(slot) + half * 2048
        p_, r_ = ureg(u)
        return lambda: b.lg(f"ds_read_b64_tr_b16 {R(p_, r_ + 4 * nb + 2 * half, 2)}, v{vDR + nb} offset:{off}", ("df", u, nb, half))

    chain = [None]

    def add_dma(groups, fn, pos, dead, deps=(), sdeps=()):
        deps = list(deps)
        p = chain[0]
        for gi, g in enumerate(groups):
            p = add("S", g, pos - len(groups) + gi - O.get("sear", 1), dead - 1, [p] + list(sdeps))
            p.setup = True
        chain[0] = add("V", fn, pos, dead, [p] + deps)
        return chain[0]

    NPF = O.get("npf", 10)
    done = set(pro_items[:npro]) | {("W", 0, q) for q in range(4)} | {("X", 0, q) for q in range(8)}
    queue = {"W": [("W", s, q) for s in range(16) for q in range(7)], "X": [("X", s, q) for s in range(16) for q in range(8)],
             "D": [("D", u, q) for u in range(NPF) for q in range(4)]}
    for k in queue:
        queue[k] = [it for it in queue[k] if it not in done]
    gm, gh = O.get("gm", 8.0), O.get("gh", 5.0)
    d0, dper, dlat = O.get("d0", 150), O.get("dper", 138), O.get("dlat", 105)
    dlast = {}
    dfree = [0]

    def window(k, s, q):
        if k == "W":
            tb = 2 * (s - 3) + (q >= 3)
            if s >= 3 and tb not in bar:
                tb += 1
            tl = min(2 * s - 1 + (q >= 4), 27)
            if tl not in bar:
                tl -= 1
            return (beta(tb) + 2 if s >= 3 else 0), beta(tl), tb, tl
        if k == "X":
            hh = 2 * s + (q >> 2) - 3
            return (xpos[xlast(hh >> 1, hh & 1)] + 7 if hh >= (0 if nb2 else 2) else 0), xw[s, q >> 2].pos, hh, None
        early = max(O["dpos"][s] if "dpos" in O else d0 + dper * s, dfree[0])
        return early, early + O.get("dprio", 60), None, None
    fpos = 1.0
    lastk = None
    while any(queue.values()):
        heads = [queue[k][0] for k in queue if queue[k]]
        avail = [it for it in heads if window(*it)[0] <= fpos]
        if not avail:
            fpos = min(window(*it)[0] for it in heads)
            continue
        k, s, q = min(avail, key=lambda it: window(*it)[1] + (O.get("alt", 0) if it[0] == lastk else 0))
        lastk = k
        queue[k].pop(0)
        early, lim, a1, a2 = window(k, s, q)
        pos = int(fpos)
        assert pos + 2 < lim or k == "D", (k, s, q, pos, lim)
        if O.get("verbose"):
            print(k, s, q, "early", early, "issue", pos, "lim", lim, "ahead", lim - pos)
        deps = []
        if k == "W":
            o = add_dma(pre_w(s, q), lambda s=s, q=q: dma_w(s, q), pos, pos + 3, [bar[a1]] if s >= 3 else [])
            barw[a2].deps.append(o)
        elif k == "X":
            if a1 >= 0 and q & 3 == 0:
                tags = [("xf",) + x for x in xall(a1 >> 1, a1 & 1)]
                deps.append(add("S", lambda tags=tags: b.wait(lg=tags), pos - 1, pos + 3, [xrd.get(x) for x in xall(a1 >> 1, a1 & 1)]))
            o = add_dma(pre_x(s, q), lambda s=s, q=q: dma_x(s, q), pos, pos + 3, deps)
            xw[s, q >> 2].deps.append(o)
        else:
            if s and q == 0:
                deps.append(add("S", lambda s=s: b.wait(lg=[("df", s - 1, 3, 1)]), pos - 1, pos + 3, [dlast[s - 1]]))
            o = add_dma(pre_d(s, 3, q), lambda s=s, q=q: dma_d(s, q), pos, pos + 3, deps)
            if q == 3:
                r0 = pos + dlat
                dp = add("S", lambda s=s: b.wait(vm=[("D", s, 3)]), r0 - 1, r0 + 6, [o])
                for kk in range(8):
                    dp = add("D", rd_d(s, 3, kk & 3, kk >> 2), r0 + kk, r0 + kk + 10, [dp])
                dlast[s] = dp
                dfree[0] = r0 + 16
        if k != "D":
            last_dma = pos
        if k != "D" and s in O.get("miss", (4, 8, 12)) and not any(it[1] == s for kk in "WX" for it in queue[kk]):
            fpos += O.get("pause", 0)
        fpos += (gm if (k != "D" and s in O.get("miss", (4, 8, 12))) else gh) * (O.get("gw", 1.0) if k == "W" else 1.0)

    touches = []
    if O.get("touchd", 1):
        tps = O.get("tdpos", TDPOS)
        for i, tp in enumerate(tps):
            touches.append(add("V", lambda: b.vm("global_load_dword v23, v22, s[4:5]", "touch"), tp, tp + 3))
            if i + 1 < len(tps):
                valu[tp + 5].append(f"v_add_u32 v22, s{sTS}, v22" if O.get("tlite") else f"v_add_u32 v22, {TL * 128}, v22")

    if O.get("wt"):
        p_ = None
        for P_ in range(1, O.get("wtn", 6)):
            tp = max(112 * (2 * P_) - O.get("wta", 336), 2 + 8 * P_)
            p_ = add("S", [f"s_add_u32 s{sRT}, s{sTS + 2}, {P_}"], tp - 4, tp, [p_])
            p_ = add("S", [f"s_and_b32 s{sRT}, s{sRT}, 7"], tp - 3, tp, [p_])
            p_ = add("S", [f"s_mul_i32 s{sRT}, s{sRT}, s{sTS + 1}"], tp - 2, tp, [p_])
            p_ = add("V", lambda: b.vm(f"buffer_load_dword v25, v26, {R('s', sW)}, s{sRT} offen", "touch"), tp, tp + 3, [p_])
            touches.append(p_)
    if O.get("codepf", 1):
        for tp in O.get("cpos", (1490,)):
            assert tp < NM - 60
            touches.append(add("V", lambda: b.vm(f"global_load_dword v24, v{vOUT}, s[46:47]", "touch"), tp, tp + 3))
    if touches:
        add("S", lambda: b.wait(vm=["touch"]), NM + 12, NM + 18, touches)

    add("X", [f"s_cmp_eq_u32 s{sCP}, 0", "s_cbranch_scc1 L_announce", "L_announced:"], beta(3) + 4, None, [bar[3]])
    slow.extend(["L_announce:", f"v_mov_b32 v{vFV}, 1", "s_mov_b64 exec, 1",
                 f"buffer_store_dword v{vFV}, off, {R('s', sG)}, 0 sc1", "s_mov_b64 exec, -1", "s_branch L_announced"])

    def poll(tag, srd, voff, soff, val, pos_issue, pos_check, deps=()):
        ld = (f"buffer_load_dword v{vFV}, off, {R('s', srd)}, {soff} sc1" if voff is None else
              f"buffer_load_dword v{vFV}, v{voff}, {R('s', srd)}, {soff} offen sc1")
        if O.get("nopoll"):
            val = 0
        o1 = add("V", lambda: b.vm(ld, tag), pos_issue, pos_issue + 3, deps)
        o2 = add("S", lambda: b.wait(vm=[tag]), pos_check - 1, pos_check + 1, [o1])
        o3 = add("X", [f"v_cmp_gt_u32 vcc, {val}, v{vFV}", f"s_cbranch_vccnz L_slow_{tag}", f"L_back_{tag}:"], pos_check, pos_check + 1, [o2])
        slow.extend([f"L_slow_{tag}:", f"s_mov_b32 s{sSPIN}, 0", f"L_spin_{tag}:", ld,
                     f"s_add_u32 s{sSPIN}, s{sSPIN}, 1", f"s_cmp_gt_u32 s{sSPIN}, 0x40000",
                     "s_cbranch_scc1 L_end", "s_waitcnt vmcnt(0)",
                     f"v_cmp_gt_u32 vcc, {val}, v{vFV}", f"s_cbranch_vccnz L_spin_{tag}", f"s_branch L_back_{tag}"])
        return o3
    pcnt = poll("cnt", sG, None, "0", 1, 56 * 16 + 50, 56 * 19 + 50)

    assert last_dma + 4 < NM - 24
    vHD, vHR, vHR2, vPW, vPR, vHD2 = 5, 6, 7, 8, 9, 10
    aset = [f"v_mov_b32 v{vHD}, v29", f"v_add_u32 v{vHR}, 65536, v28", f"v_add_u32 v{vHR2}, 131072, v28",
            f"v_lshl_add_u32 v{vPW}, v0, 2, s{sM0X}", f"v_xor_b32 v{vPR}, 32768, v{vPW}",
            f"v_sub_u32 v{vHD2}, v29, v{vL16}", f"v_lshl_add_u32 v{vHD2}, v{vHD2}, 3, v{vL16}"]
    aset += ["v_and_b32 v2, 15, v0", "v_lshlrev_b32 v2, 11, v2", f"v_bfe_u32 v{vOUT}, v0, 4, 1",
             f"v_lshl_add_u32 v2, v{vOUT}, 5, v2", f"v_lshrrev_b32 v{vOUT}, 5, v0", f"v_lshl_add_u32 v{vOUT}, v{vOUT}, 4, v2"]
    for i, x in enumerate(aset):
        valu[NM - 24 + i].append(x)

    hout = lambda blk, jm: acc1(blk, 0, jm) if blk < 5 else 112 + 4 * jm

    def epi(blk):
        ins = []
        for j0 in (0, 2):
            g = [acc1(blk, 0, j0) + x for x in range(8)]
            t = [vTMP + x for x in range(8)]
            at = max(adone[2 * blk, j0], adone[2 * blk, j0 + 1]) + 7
            ins += [(at, f"v_mul_f32 v{t[x]}, s{sNL2E}, v{g[x]}") for x in range(8)]
            ins += [(at, f"v_exp_f32 v{t[x]}, v{t[x]}") for x in range(8)]
            ins += [(at, f"v_add_f32 v{t[x]}, 1.0, v{t[x]}") for x in range(8)]
            ins += [(at, f"v_rcp_f32 v{t[x]}, v{t[x]}") for x in range(8)]
            ins += [(at, f"v_mul_f32 v{g[x]}, v{g[x]}, v{t[x]}") for x in range(8)]
        for j0 in (2, 0):
            g = [acc1(blk, 0, j0) + x for x in range(8)]
            u = [acc1(blk, 1, j0) + x for x in range(8)]
            at = max(adone[2 * blk + 1, j0], adone[2 * blk + 1, j0 + 1]) + 7
            ins += [(at, f"v_mul_f32 v{u[x]}, v{g[x]}, v{u[x]}") for x in range(8)]
            for x in range(0, 8, 2):
                jm = j0 + (x >> 2)
                if blk == 0:
                    d = acc1(0, 0, j0) + (x >> 1)
                elif blk & 1:
                    d = hout(blk, jm) + ((x >> 1) & 1)
                else:
                    d = hout(blk - 1, jm) + 2 + ((x >> 1) & 1)
                ins.append((at, f"v_cvt_pk_bf16_f32 v{d}, v{u[x]}, v{u[x + 1]}"))
            if blk == 0:
                d = acc1(0, 0, j0)
                ins.append((at, "s_nop 1"))
                ins.append((at, f"v_permlane32_swap_b32 v{d}, v{d + 2}"))
                ins.append((at, f"v_permlane32_swap_b32 v{d + 1}, v{d + 3}"))
                ins.append((at, ("st", f"buffer_store_dwordx4 {R('v', d)}, v{vHL}, {R('s', sHS)}, s{sHLB if j0 else sHLA} offen sc1", 1, None)))
            elif not blk & 1:
                r = sHB if j0 else sHA
                for jm in (j0, j0 + 1):
                    ins.append((at, ("st", f"buffer_store_dwordx4 {R('v', hout(blk - 1, jm))}, v{vL16}, {R('s', sHS)}, s{r} offen offset:{(jm & 1) * 1024} sc1",
                                     1 + blk // 2, f"s_add_u32 s{r}, s{r}, 65536" if jm & 1 and blk < 6 else None)))
        return ins

    tslot = lambda n: 17 if n < NM else 19 if n < NM + 26 else O.get("tt", 34) if n < NT else 12 + 560 // O.get("e6", 60) if n < NT + 2 + O.get("e6", 60) else O.get("t2", 17)
    T = {NM - 16: 0}
    for n in range(NM - 16, NT + NE + 896 + 200):
        T[n + 1] = T[n] + tslot(n)

    def at_time(t):
        n = NM - 16
        while T[n] < t:
            n += 1
        return n
    cost = lambda x: 0 if isinstance(x, tuple) else 2 if ("exp" in x or "rcp" in x) else 1
    last_store = {}
    stimes = []
    fp = 0.0
    edone = {}
    for blk in range(7):
        for at, x in epi(blk):
            if isinstance(x, tuple):
                ps = max(pos + 1, at_time(stimes[-1] + O.get("sg%d" % x[2], O.get("sg", 400))) if stimes else 0)
                stimes.append(T[ps])
                o = add("V", lambda x=x: b.vm(x[1], ("H", x[2])), ps, ps + 2, [last_store.get(x[2])])
                last_store[x[2]] = o
                if x[3]:
                    add("S", [x[3]], ps, ps + 8, [o])
            else:
                fp = max(fp, at)
                pos = int(fp)
                valu[pos].append(x)
                fp += cost(x) / (O.get("er0", 5.0) if blk == 0 else O.get("er", 4.4) if pos < NT else O.get("er2", 2.5))
        edone[blk] = pos + 1
    EE = edone[6]
    assert edone[5] <= NT + 30 and EE <= NT + 94
    if O.get("verbose"):
        print("epilogue ends", {k: v - NM for k, v in edone.items()})

    flagop = {}

    def flag(stage, pos, soff=sFP, val=None):
        valu[pos - 2].append(f"v_mov_b32 v2, {stage if val is None else val}")
        o = add("S", lambda: b.wait(vm=[("H", stage)]), pos - 1, pos + 1, [last_store[stage], pcnt])

        def f():
            e("s_mov_b64 exec, 1")
            b.vm(f"buffer_store_dword v2, off, {R('s', sF)}, s{soff} sc1")
            e("s_mov_b64 exec, -1")
        flagop[stage] = add("X", f, pos, pos + 2, [o])
    for st in range(1, 5):
        flag(st, at_time(T[last_store[st].pos] + O.get("fd%d" % st, O.get("fd", 1000))))

    KL = 16
    JL = [0, 2, 1, 3, 4, 5, 6, 7]
    quads = [(k0, jl) for k0 in range(0, 28 - KL, 4) for jl in range(8)] + [(k0, jl) for jl in JL for k0 in range(28 - KL, 28, 4)]
    frags = [(k0 + k, jl) for k0, jl in quads for k in range(4)]
    hreg = lambda H: WR[H % 8]
    started = set()
    nchain = 0
    for Q, (k0, jl) in enumerate(quads):
        for nb in (range(4) if Q & 1 else range(3, -1, -1)):
            for k in (range(3, -1, -1) if nchain & 1 else range(4)):
                ks, H = k0 + k, 4 * Q + k
                d = R(acc2f(jl), acc2(jl, nb))
                c = d if (jl, nb) in started else "0"
                started.add((jl, nb))
                slots.append((f"v_mfma_f32_16x16x32_bf16 {d}, {R(ureg(ks)[0], ureg(ks)[1] + 4 * nb)}, {R('a', hreg(H))}, {c}",
                              [("df", ks, nb, 1), ("hf", H)], []))
            nchain += 1
    NEND = len(slots)
    first_use = lambda u: N2 + 16 * min(H >> 2 for H, (ks, jl) in enumerate(frags) if ks == u)
    last_use = lambda u: N2 + 16 * max(H >> 2 for H, (ks, jl) in enumerate(frags) if ks == u) + 15
    HB = [131072, 65536, 98304]

    beta2 = lambda g: N2 + 64 * g + O.get("beta2", 46) if g >= 0 else NT - O.get("beta2i", 13)
    b2w, b2 = {}, {}
    b2lg = defaultdict(list)
    hp = None
    for g in range(-1, 14):
        if g >= 0:
            for i in range(16):
                H = 16 * g + i
                pos = N2 + 16 * ((H >> 2) - 1) + O.get("hsp", 2) * (H & 3)
                if i < 4:
                    pos = max(pos, beta2(g - 1) + 2 + (H & 3))
                off = HB[g % 3] + i * 1024
                v, off = (vHR, off - 65536) if off < 131072 else (vHR2, off - 131072)
                txt = f"ds_read_b128 {R('a', hreg(H))}, v{v} offset:{off}"
                hp = add("D", lambda txt=txt, H=H: b.lg(txt, ("hf", H)), pos, max(pos + 1, min(pos + 5, N2 + 16 * (H >> 2) - 4)), [hp, b2[g - 1] if i == 0 else None])
            b2lg[g].append(("hf", 16 * g + 15))
        else:
            hp = prev
            b2lg[g].append(("wf", len(frs) - 1, 1))
        if g < 13:
            b2w[g] = add("S", lambda g=g: b.wait(vm=[("h", 8 * g + 15)], lg=b2lg[g]), beta2(g), beta2(g) + 1, [hp])
            b2[g] = add("S", ["s_barrier" if not O.get("nobar") else "s_nop 0"], beta2(g) + 1, beta2(g) + 2, [b2w[g]])

    VG = O.get("vg", 70)
    LAT = O.get("lat", 900)
    pf = O.get("pollpf", 900)
    SK = O.get("sk", 100)

    hpos = {}
    h0 = NM + O.get("h0", 150)
    for pi in range(112):
        g, i = pi >> 3, pi & 7
        if g == 0:
            hpos[pi] = at_time(T[h0] + i * VG)
        elif g <= 2:
            hpos[pi] = at_time(T[beta2(-1) + 2] + (pi - 8) * O.get("vg1", 75) + (O.get("g2d", 0) + (pi - 16) * O.get("vg2", 40) if g == 2 else 0))
        else:
            hpos[pi] = max(beta2(g - 3) + 3 + (8 if g < O.get("gq", 9) else O.get("hq", 8)) * i, hpos[pi - 1] + O.get("hmin", 4))
    slot_free, slot_dep = {}, {}
    for sl, (s_, a) in enumerate(((15, 0), (15, 1), (14, 1))):
        slot_free[sl] = xpos[xlast(s_, a)] + 7
        slot_dep[sl] = ([xrd[x] for x in xall(s_, a)], [("xf",) + x for x in xall(s_, a)])
    slot_free[3] = max(dfree[0], NM - 16)
    slot_dep[3] = ([dlast[NPF - 1]], [("df", NPF - 1, 3, 1)]) if NPF else ([], [])
    htimes = sorted(T[p_] for p_ in hpos.values())
    tn = 0
    rdiv = []
    dmas = []
    for u in range(NPF, 28):
        sl = min(slot_free, key=lambda x: (slot_free[x], x))
        dep, tag = slot_dep[sl]
        dps = []
        for q in range(4):
            tn = max(tn, T[slot_free[sl]])
            while True:
                gapd = VG if tn < T[N2] else O.get("vgd", 150)
                keep = gapd - 8 if tn < T[N2] else 50
                near = [t + keep for t in htimes if abs(t - tn) < keep]
                near += [t + SK for t in stimes if t - 40 < tn < t + SK]
                if not near:
                    break
                tn = max(near)
            pos = at_time(tn)
            dps.append(pos)
            tn += gapd
        ready = at_time(T[pos] + LAT)
        free = {10: edone[0], 11: last_store[1].pos + 4, 12: edone[1], 13: edone[2], 14: last_store[2].pos + 4, 15: edone[3],
                16: edone[4], 17: edone[4], 18: last_store[3].pos + 4, 19: last_store[4].pos + 4}.get(
            u, NM if u < NS else last_use(u - NS) + 1)
        r0 = max(min(ready, first_use(u) - 26), free, pos + 4)
        while True:
            sp = 1 if r0 < NT else 2
            r1 = int(r0 + 8 * sp)
            clash = [iv for iv in rdiv if iv[0] < r1 and r0 < iv[1]]
            if not clash:
                break
            r0 = max(iv[1] for iv in clash)
        rdiv.append((r0, r1))
        assert r1 <= first_use(u) - 4, (u, r0, first_use(u))
        if O.get("verbose"):
            print("unit", u, "slot", sl, "dma", dps, "read", r0, "use", first_use(u))
        ws = []
        k = 0
        dp = {11: last_store[1], 14: last_store[2], 18: last_store[3], 19: last_store[4]}.get(u)
        for half in range(2):
            p_ = int(r0 + sp * k)
            w = add("S", lambda u=u, half=half: b.wait(vm=[("D", u, 2 * half + 1)]), p_ - 1, p_ + 3)
            ws.append(w)
            for nb in range(4):
                p_ = int(r0 + sp * k)
                dp = add("D", rd_d(u, sl, nb, half), p_, min(p_ + 6, first_use(u) - 2), [w, dp])
                k += 1
        for q in range(4):
            dmas.append((dps[q], "D", (u, sl, q, dep, tag, ws)))
        dlast[u] = dp
        slot_free[sl] = r1 + 5
        slot_dep[sl] = ([dp], [("df", u, 3, 1)])
    for pi in range(112):
        dmas.append((hpos[pi], "h", pi))
    dmas.sort(key=lambda x: x[0])
    stage_of = lambda ks: 1 if ks < 4 else 2 + ((ks - 4) >> 3)
    seen = 0
    chk = pcnt
    for pos, kind, a in dmas:
        if kind == "D":
            u, sl, q, dep, tag, ws = a
            deps = []
            if q == 0:
                deps = [add("S", lambda tag=tag: b.wait(lg=tag), pos - 1, pos + 3, dep)]
            o = add_dma(pre_d(u, sl, q), lambda u=u, q=q: dma_d(u, q), pos, pos + 3, deps)
            if q & 1:
                ws[q >> 1].deps.append(o)
        else:
            pi = a
            ks, jl = frags[2 * pi]
            ks1 = frags[2 * pi + 1][0]
            g, i = pi >> 3, pi & 7
            deps = [bar[27] if g == 0 else b2[max(g - 3, -1)]]
            if stage_of(ks1) > seen:
                seen = stage_of(ks1)
                chk = poll(f"f{seen}", sF, vFP, f"s{sFC}", seen, max(at_time(T[pos] - O.get("pf%d" % seen, pf)), chk.pos + 2), pos - 1, [chk])
                chk.deps.append(flagop[seen])
                assert flagop[seen].pos < chk.pos
                if O.get("verbose"):
                    print("poll", seen, "check at", pos - 1 - NM, "own flag at", flagop[seen].pos - NM)
            deps.append(chk)
            g_ = m0_ops(sM0H, HB[g % 3] + (i >> 1) * 4096) + [[f"s_mov_b32 s{sA}, {ks * 8192 + jl * 1024 - (i & 1) * 2048}"]]
            if O.get("dx"):
                g_[-1] = [f"s_add_u32 s{sA}, s{sRT + (i & 1)}, {(ks & ~3) * 8192 + jl * 1024 + (2048 if i & 1 == 0 else 0)}"]
            txt = f"buffer_load_dwordx4 v{vHD if ks1 == ks else vHD2}, {R('s', sHL)}, s{sA} offen offset:{(i & 1) * 2048} sc1 lds"
            o = add_dma(g_, lambda txt=txt, pi=pi: b.vm(txt, ("h", pi)) if pi < O.get("noh", 999) else b.vm_tag.__setitem__(("h", pi), 0), pos, pos + 3, deps)
            if i == 7:
                b2w[g - 1].deps.append(o)
                assert pos + 3 < beta2(g - 1), (pi, pos, beta2(g - 1))

    NQ = N2 + 32 * (28 - KL)
    eend = lambda jl: NQ + 64 * (JL.index(jl) + 1)
    add("X", [f"s_add_u32 s{sHS}, s{sF}, {XOFF}", f"s_addc_u32 s{sHS + 1}, s{sF + 1}, 0", f"s_mov_b32 s{sHS + 2}, {1024 * 8192}"],
        NQ, None, [last_store[4]])
    valu[NQ + 8].append(f"v_add_u32 v{vHL}, 4096, v{vL16}")
    add("S", [f"s_mov_b32 s{sB_}, 32768"], NQ + 10)

    zone = lambda jl: 32 if jl & 1 else 48

    def lds_swap(jl):
        off = (jl >> 2) * 8192 + (jl & 1) * 4096
        wp = add("S", lambda: b.wait(lg=[("df", u, 3, 1) for u in range(28)]), eend(jl) + 4, None, list(dlast.values()))
        for k in range(16):
            pos = eend(jl) + 6 + (O.get("wsp", 8) * k) // 4
            txt = f"ds_write_b32 v{vPW}, a{acc2(jl, 0) + k} offset:{off + k * 256}"
            wp = add("D", lambda txt=txt, k=k: b.lg(txt, ("pw", jl, k >> 2)), pos, pos + 3, [wp])
        g = min(g for g in b2 if beta2(g) > pos + 6)
        b2w[g].deps.append(wp)
        b2lg[g].append(("pw", jl, 3))
        rp = b2[g]
        for k in range(8):
            pos = beta2(g) + 3 + (3 * k) // 2
            txt = f"ds_read2st64_b32 {R('v', zone(jl) + 2 * k, 2)}, v{vPR} offset0:{off // 256 + 2 * k} offset1:{off // 256 + 2 * k + 1}"
            rp = add("D", lambda txt=txt, k=k: b.lg(txt, ("pr", jl, k >> 1)), pos, pos + 4, [rp])
        return rp
    xldl = {}
    for e_ in range(2):
        ra = lds_swap(e_)
        p0 = eend(2 + e_) + 4
        assert ra.pos + 4 < p0
        add("S", lambda e_=e_: b.wait(lg=[("pr", e_, 3)]), p0 - 1, p0, [ra])
        sp_ = None
        for k in range(4):
            pos = p0 + 2 * k
            a, s_ = acc2(2 + e_, k), zone(e_) + 4 * k
            for x in range(4):
                valu[pos + (x >> 1)].append(f"v_add_f32 v{a + x}, v{a + x}, v{s_ + x}")
            ps = p0 + 2 + O.get("ssp%d" % e_, (16, 8)[e_]) * k
            txt = f"buffer_store_dwordx4 {R('v', a)}, v{vHL if e_ else vL16}, {R('s', sHS)}, s{sXO} offen offset:{k * 1024} {O.get('xst', 'sc1')}"
            if O.get("xhalf") and k & 1 == 0:
                continue
            sp_ = add("V", lambda txt=txt, e_=e_: b.vm(txt, ("H", 5 + e_)), ps, ps + 2, [sp_])
        last_store[5 + e_] = sp_
        xf = sp_.pos + O.get("xfd%d" % e_, (64, 56)[e_])
        flag(5 + e_, xf, sXFO, 1 + e_)
        xc = min(xf + O.get("xpd%d" % e_, (140, 110)[e_]), NEND - 8)
        chk = poll(f"fx{e_}", sF, None, f"s{sXFI}", 1 + e_, max(xc - O.get("xpf%d" % e_, 50), chk.pos + 2), xc, [chk])
        chk.deps.append(flagop[5 + e_])
        assert flagop[5 + e_].pos < chk.pos
        lp = chk
        for k in range(4):
            txt = f"buffer_load_dwordx4 {R('v', acc2(2 + e_, k))}, v{vHL if e_ else vL16}, {R('s', sHS)}, s{sXI} offen offset:{k * 1024} sc1"
            if O.get("xhalf") and k & 1 == 0:
                continue
            lp = add("V", lambda txt=txt, k=k, e_=e_: b.vm(txt, ("xr", e_, k)), xc + 1 + k, xc + 3 + k, [lp])
        xldl[e_] = lp
        if O.get("verbose"):
            print("exchange", e_, "adds", p0, "flag", xf, "check", xc, "end", NEND)
    rc = [lds_swap(4), lds_swap(5)]

    def fin(e_, k2, pk):
        ins = []
        for k in (k2, k2 + 1):
            a = acc2(6 + e_, k)
            for s_ in (zone(e_) + 4 * k, acc2(2 + e_, k)):
                if pk:
                    ins += [f"v_pk_add_f32 {R('v', a + x, 2)}, {R('v', a + x, 2)}, {R('v', s_ + x, 2)}" for x in (0, 2)]
                else:
                    ins += [f"v_add_f32 v{a + x}, v{a + x}, v{s_ + x}" for x in range(4)]
        a = acc2(6 + e_, k2)
        ins += [f"v_cvt_pk_bf16_f32 v{a + x}, v{a + 2 * x}, v{a + 2 * x + 1}" for x in range(4)]
        ins += ["s_nop 1", f"v_permlane16_swap_b32 v{a}, v{a + 2}", f"v_permlane16_swap_b32 v{a + 1}, v{a + 3}"]
        so = f"s{sB_}" if e_ else "0"
        st = f"buffer_store_dwordx4 {R('v', a)}, v{vOUT}, {R('s', sO)}, {so} offen offset:{(k2 >> 1) * 64} {O.get('ofl%d' % e_, O.get('ofl', 'sc1'))}".rstrip()
        return ins, st
    p0 = eend(6) + 5
    add("S", lambda: b.wait(lg=[("pr", 4, 3)], vm=[("xr", 0, 3)]), p0 - 1, p0, [rc[0], xldl[0]])
    for k2 in (0, 2):
        ins, st = fin(0, k2, False)
        for x in ins[:-3]:
            valu[p0].append(x)
            if len(valu[p0]) >= 2:
                p0 += 1
        valu[p0].extend(ins[-3:])
        add("V", lambda st=st: b.vm(st), p0 + 1, p0 + 2)
        p0 += 1

    b.wait(vm=[("W", 0, 3 if nb2 else 6)])
    e("s_barrier")
    stamp()
    for f in pro[:4]:
        f()
    for jm in range(4):
        b.wait(vm=[("X", 0, 2 * jm + 1)])
        rd_x(0, jm)()
        if not nb2:
            rd_x(1, jm)()
    for f in pro[4:]:
        f()
    ops.sort(key=lambda o: (o.pos, o.seq))
    head = 0
    live = []

    def run(o, n):
        for d in o.deps:
            if not d.done:
                run(d, n)
        k = len(b.out)
        o.fn()
        o.done = True
        o.at = n
        if o.pos > n and o in ops:
            assert o.kind == "S" or O.get("lax"), ("forced early", o.kind, o.pos, n, b.out[-1])
        return sum(1 for x in b.out[k:] if not x.endswith(":"))

    over = two = 0
    notes = {112 * s_: f"GEMM1, K stage {s_} of this workgroup's order (64 deep)" for s_ in range(14)}
    notes.update({NM + 32 * k: f"GEMM1, last two stages of column block {k}; silu(gate) * up of the finished blocks in between" for k in range(7)})
    notes.update({NT + 128 * k: f"GEMM2, k-steps {4 * k}..{4 * k + 3} of all eight row blocks" for k in range(3)})
    notes.update({NQ + 64 * k: f"GEMM2, k-steps 12..27 of row block {jl}" for k, jl in enumerate(JL)})
    for n, (txt, lgt, vmt) in enumerate(slots):
        if n in notes:
            e("; ---- " + notes[n])
        if n in (NM, NT) or n in O.get("spos", ()):
            stamp()
        if txt is not None:
            assert b.issued(vmt, lgt), (n, txt)
            b.wait(vm=vmt, lg=lgt)
            e(txt)
            if n in O.get("trace", ()):
                r_ = TRC[O["trace"].index(n)]
                e(f"{'s_memrealtime' if O.get('rt') else 's_memtime'} s[{r_}:{r_ + 1}]")
        while head < len(ops) and ops[head].pos <= n:
            live.append(ops[head])
            head += 1
        live = [o for o in live if not o.done]
        live.sort(key=lambda o: (o.dead, o.seq))
        ready = lambda o: not o.done and all(d.done and (d.at < n or not d.setup or o.kind != "V") for d in o.deps)
        nxt = slots[n + 1] if n + 1 < len(slots) else (None, [], [])
        va = valu.pop(n, [])
        budget = 2 if txt is not None else 6
        if txt is not None and len(va) == 1 and cost(va[0]) == 1:
            budget = 1
        used = 0
        nmem = 0
        maxmem = O.get("maxmem", 1) if txt is not None and not NM + 24 <= n < EE else 9
        if nxt[0] is not None and b.issued(nxt[2], nxt[1]) and b.needs(nxt[2], nxt[1]):
            b.wait(vm=nxt[2], lg=nxt[1])
        else:
            while True:
                c = [o for o in live if o.kind == "S" and ready(o)]
                if not c:
                    break
                k = run(c[0], n)
                if k:
                    used += k - 1
                    break
        while True:
            c = [o for o in live if ready(o)]
            must = [o for o in live if not o.done and o.dead <= n + 1]
            if must:
                nmem += must[0].kind in "DV"
                used += run(must[0], n)
                continue
            if nmem >= maxmem:
                c = [o for o in c if o.kind not in "DV"]
            if used >= budget or not c:
                break
            mem = [o for o in c if o.kind in "DV"]
            if va and not mem:
                break
            nmem += bool(mem)
            used += run((mem or c)[0], n)
        two += nmem > 1 and n < NM
        over += max(0, used - budget) if n < NM else 0
        for x in va:
            e(x)
    for o in ops:
        if not o.done:
            run(o, NEND)
    assert not valu, list(valu)
    if O.get("verbose"):
        print("over budget in main:", over, "two mem:", two)
    stamp()

    b.wait(lg=[("pr", 5, 3)])
    e("s_nop 4")
    for k2 in (0, 2):
        b.wait(vm=[("xr", 1, k2 + 1)])
        ins, st = fin(1, k2, True)
        for x in ins:
            e(x)
        b.vm(st)
    if stamps:
        stamp()
        e("s_waitcnt vmcnt(0)")
        stamp(True)
        e("s_memrealtime s[98:99]")
        e("s_waitcnt lgkmcnt(0)")
        if "probe" in O:
            k = O["probe"]
            if O.get("probewg", 100) >= 0:
                e(f"s_cmp_lg_u32 s2, {O.get('probewg', 100)}")
                e("s_cbranch_scc1 L_end")
            if k == -1:
                e(f"s_mov_b32 s{sA}, 0")
            elif k == -2:
                e(f"s_sub_u32 s{sA}, s98, s100")
                e(f"s_mul_i32 s{sA}, s{sA}, 20")
            else:
                e(f"s_sub_u32 s{sA}, s{sST + k + 1}, s{sST + k}")
            e(f"s_min_u32 s{sA}, s{sA}, 100000")
            e(f"s_add_u32 s{sA}, s{sA}, 10000")
            e("L_probe:")
            e("s_memrealtime s[98:99]")
            e("s_waitcnt lgkmcnt(0)")
            e("s_sub_u32 s98, s98, s100")
            e(f"s_cmp_lt_u32 s98, s{sA}")
            e("s_cbranch_scc1 L_probe")
            e("s_endpgm")
        e(f"s_mov_b32 s{sF + 2}, 0x100000")
        e(f"s_lshl2_add_u32 s{sA}, s2, s{sWV}")
        e(f"s_lshl_b32 s{sA}, s{sA}, 7")
        e(f"s_add_u32 s{sA}, s{sA}, {SOFF}")
        vals = [sST + i + 2 * (sST + i >= sRT) for i in range(nst[0])] + [100, 98] + list(TRC[:len(O.get('trace', ()))])
        for i, r in enumerate(vals):
            e(f"v_mov_b32 v2, s{r}")
            e(f"buffer_store_dword v2, off, {R('s', sF)}, s{sA} offset:{4 * i}")
    e("s_endpgm")
    if "@SLOW@" in b.out:
        i = b.out.index("@SLOW@")
        b.out[i:i + 1] = slow
    else:
        for x in slow:
            e(x)
    e("L_end:")
    e("s_endpgm")
    if O.get("pads", 1):
        add_pads(b.out)
    return b.out, nst[0]


def isize(x):
    if x.endswith(":") or x.startswith((".", ";")):
        return 0
    op, _, rest = x.partition(" ")
    if op.startswith(("v_mfma", "ds_", "buffer_", "global_", "v_pk_", "s_load", "s_mem")):
        return 8
    if op in ("v_cvt_pk_bf16_f32", "v_lshl_add_u32", "v_bfe_u32", "v_mad_u32_u24", "v_mad_i32_i24", "v_mul_hi_u32", "v_lshl_add_u64"):
        return 8
    if op.startswith(("s_waitcnt", "s_barrier", "s_nop", "s_branch", "s_cbranch", "s_endpgm", "s_movk", "s_setprio", "s_getpc", "s_getreg")):
        return 4
    for a in rest.split(","):
        a = a.strip()
        if a.startswith("L_"):
            return 8
        try:
            v = int(a, 0)
        except ValueError:
            continue
        if not -16 <= v <= 64:
            return 8
    return 4


def add_pads(out):
    i = out.index("L_main:") + 1
    addr, k = 0, 0
    at = []
    while out[i] != "L_end:":
        page = k * 4096
        prev = out[i - 1]
        nxt = addr + isize(out[i])
        shadow = prev.startswith("v_mfma") and not out[i].startswith("s_")
        glued = out[i].startswith(("s_addc", "s_cbranch", "v_permlane")) or out[i].endswith(":") or " exec," in prev or " exec," in out[i]
        if addr >= page and not glued and (shadow or k == 0 or nxt + 12 > page + 60):
            assert addr + 4 <= page + 64, (k, addr)
            out[i:i] = [f"L_pad{k}:", "s_nop 0"]
            at.append(i + 1)
            addr += 4
            i += 2
            k += 1
            continue
        addr = nxt
        i += 1
    assert k >= 4
    for j, p in enumerate(at):
        out[p] = f"s_cbranch_vccnz {'L_pad%d' % (j + 4) if j + 4 < k else 'L_warm'}"


HEADER = """; Fused SwiGLU FFN: out = (silu(x @ w_gate) * (x @ w_up)) @ w_down in one launch of 256 workgroups (one per CU).
; @launch grid=(256,1,1) block=(256,1,1) lds=163840
.amdgcn_target "amdgcn-amd-amdhsa--gfx950"
.text
.globl {k}
.p2align 8
.type {k},@function
{k}:
"""
FOOTER = """.section .rodata,"a"
.p2align 6
.amdhsa_kernel {k}
  .amdhsa_next_free_vgpr 512
  .amdhsa_next_free_sgpr 102
  .amdhsa_accum_offset 256
  .amdhsa_group_segment_fixed_size 0
  .amdhsa_kernarg_size 56
  .amdhsa_user_sgpr_count 2
  .amdhsa_user_sgpr_kernarg_segment_ptr 1
  .amdhsa_system_sgpr_workgroup_id_x 1
  .amdhsa_float_denorm_mode_32 3
.end_amdhsa_kernel
"""


def write(path, **kw):
    body, n = gen(**kw)
    with open(path, "w") as f:
        f.write(HEADER.format(k=KNAME))
        f.write("\n".join(x if x.endswith(":") and not x.startswith(";") else "    " + " ".join(x.split()) for x in body) + "\n")
        f.write(FOOTER.format(k=KNAME))
    return n


if __name__ == "__main__":
    write(sys.argv[1] if len(sys.argv) > 1 else "standalone__swiglu_ffn__prompt.s")
```

```python
import sys
from collections import defaultdict

KNAME = "standalone__swiglu_ffn__prompt_kernel"
HOFF = 0x100000
FOFF = 0x0
XOFF = 0x1000000
SOFF = 0x80000


class B:
    def __init__(self):
        self.out = []
        self.vm_n = 0
        self.vm_tag = {}
        self.vm_done = 0
        self.lg_n = 0
        self.lg_tag = {}
        self.lg_done = 0

    def e(self, s):
        self.out.append(s)

    def vm(self, s, tag=None):
        if s.endswith(" lds") and " m0," in self.out[-1]:
            self.e("s_nop 0")
        self.e(s)
        self.vm_n += 1
        if tag is not None:
            self.vm_tag[tag] = self.vm_n

    def lg(self, s, tag=None):
        self.e(s)
        self.lg_n += 1
        if tag is not None:
            self.lg_tag[tag] = self.lg_n

    def issued(self, vm=(), lg=()):
        return all(t in self.vm_tag for t in vm) and all(t in self.lg_tag for t in lg)

    def needs(self, vm=(), lg=()):
        return (max([self.vm_tag[t] for t in vm], default=0) > self.vm_done or
                max([self.lg_tag[t] for t in lg], default=0) > self.lg_done)

    def wait(self, vm=(), lg=()):
        parts = []
        need = max([self.vm_tag[t] for t in vm], default=0)
        if need > self.vm_done:
            n = self.vm_n - need
            parts.append(f"vmcnt({min(n, 63)})")
            self.vm_done = need if n <= 63 else self.vm_n - 63
        need = max([self.lg_tag[t] for t in lg], default=0)
        if need > self.lg_done:
            n = self.lg_n - need
            parts.append(f"lgkmcnt({min(n, 15)})")
            self.lg_done = need if n <= 15 else self.lg_n - 15
        if parts:
            self.e("s_waitcnt " + " ".join(parts))

    def wait_all(self, vm=False, lg=False):
        parts = []
        if vm and self.vm_done < self.vm_n:
            parts.append("vmcnt(0)")
            self.vm_done = self.vm_n
        if lg and self.lg_done < self.lg_n:
            parts.append("lgkmcnt(0)")
            self.lg_done = self.lg_n
        if parts:
            self.e("s_waitcnt " + " ".join(parts))


class Op:
    __slots__ = ("kind", "fn", "pos", "dead", "deps", "done", "seq", "at", "setup")

    def __init__(self, kind, fn, pos, dead, deps, seq):
        self.kind, self.fn, self.pos, self.dead, self.deps, self.seq = kind, fn, pos, dead, deps, seq
        self.done = False
        self.at = None
        self.setup = False


def R(p, a, n=4):
    return f"{p}[{a}:{a + n - 1}]"


sX, sW, sD, sHS, sHL, sO, sF, sG = 8, 12, 16, 20, 24, 28, 32, 36
sWV = 40
sT0 = 41
sXQ = 48
sM0X, sM0W, sTI = 56, 57, 58
sHA, sHB, sHLA, sHLB = 59, 60, 61, 62
sFP, sFC, sCP, sNL2E = 63, 64, 65, 66
sSPIN = 67
sA, sB_ = 68, 69
sM0H, sXO, sXI, sXFO, sXFI = 0, 1, 41, 42, 43
sX0 = 6
sPM, sWO, sXO_ = 70, 72, 73
sTS = 74
sGR = 77
sRT = 92
sK = 80
sST = 78
vXD, vXR, vWD, vWR, vDD, vDR, vL16, vHL, vFP, vFV, vTMP, vWR2, vOUT = 1, 3, 5, 12, 13, 14, 18, 19, 20, 21, 22, 30, 31
ACC = 32
aXF, aWF, aDF = 0, 64, 88
RW = 6
RH = 8
TRC = (80, 82, 84, 86, 88, 90, 94, 96)
TDPOS = (300, 700, 760, 1150)
WST = 64 * 7168


def acc1(b, gu, jm):
    return ACC + 32 * b + 16 * gu + 4 * jm


def acc2(jl, nb):
    return (0, 16, 192, 208, 32, 48, 224, 240)[jl] + 4 * nb


def acc2f(jl):
    return "v" if jl & 2 else "a"


BEST = {'h0': 170, 'pf1': 700, 'g2d': 400, 'pf2': 900, 'xfd1': 50, 'wsp': 8, 'xpd1': 130, 'sg2': 250, 'sk': 150, 'dprio': 120,
        'fd4': 1000, 'sg1': 0, 'gw': 1.0, 'sg3': 250, 'pf4': 900, 'ssp0': 8, 'vgd': 165, 'dper': 138, 'nb2': 4, 'ssp1': 4, 'dlat': 80,
        'sg4': 150, 'xpf1': 30, 'pause': 30, 'fd3': 1200, 'lat': 600, 'pf3': 600, 'fd1': 850, 'vg': 70, 'npro': 5, 'vg2': 60,
        'vg1': 90, 'beta2i': 13, 'map2': 3, 'fd2': 1000, 'gm': 8, 'xpd0': 140}
BEST.update({'nb2': 2, 'e6': 44, 'sg4': 400, 'vg2': 20, 'perm': 'split4', 'chk': 1, 'miss': (), 'gh': 5.8, 'dx': 2, 'er0': 7, 'er': 4.6, 'er2': 3.5, 'fast': 0, 'cpos': (), 'rsel': 2, 'no3': 1, 'sg4': 250, 'pf4': 700, 'x1': 40, 'xpd1': 100})


def stage_orders(kind):
    def lead(r, n, d, start=1):
        o = list(range(16))
        for s in range(start, 16):
            if s % n == r:
                o.remove(s)
                o.insert(max(s - d, 0), s)
        return o
    if kind == "none":
        return [list(range(16))]
    if kind == "rot4":
        return [[(s & ~3) + ((s + r) & 3) for s in range(16)] for r in range(4)]
    if kind == "rot2":
        return [[(s & ~1) + ((s + r) & 1) for s in range(16)] for r in range(2)]
    if kind == "lead1":
        return [lead(r, 4, 1) for r in range(4)]
    if kind == "lead2":
        return [lead(r, 4, 2) for r in range(4)]
    if kind == "rot4lead1":
        return [[(s + r) & 3 for s in range(3)] + [x for x in lead(r, 4, 1, 4) if x not in [(s + r) & 3 for s in range(3)]] for r in range(4)]
    if kind == "lead1x":
        return [[(x + 8 * g) & 15 for x in lead(r, 4, 1)] for g in range(2) for r in range(4)]
    if kind == "trail0":
        return [lead(r, 4, 1) for r in range(4)] + [list(range(16))] * 4
    if kind == "trail1":
        return [lead(r, 4, 1) for r in range(4)] + [[15] + list(range(15))] * 4
    if kind == "trail1l":
        return [lead(r, 4, 1) for r in range(4)] + [[15] + [x for x in lead(r, 4, 1) if x != 15] for r in range(4)]
    if kind.startswith("split"):
        n = int(kind[5:])
        a = [[y for y in lead(r, 4, 1) if y < 16 - n] + list(range(16 - n, 16)) for r in range(4)]
        b_ = [[16 - n + y for y in lead(r, 4, 1) if y < n] + list(range(16 - n)) for r in range(4)]
        return a + b_
    if kind.startswith("spl2_"):
        n = int(kind[5:])
        a = [[y for y in lead(r, 4, 2) if y < 16 - n] + list(range(16 - n, 16)) for r in range(4)]
        b_ = [[16 - n + y for y in lead(r, 4, 2) if y < n] + list(range(16 - n)) for r in range(4)]
        return a + b_
    if kind.startswith("spl0_"):
        n = int(kind[5:])
        return [list(range(16))] * 4 + [list(range(16 - n, 16)) + list(range(16 - n))] * 4
    if kind == "rtrail":
        return [[(s & ~3) + ((s + r) & 3) for s in range(16)] for r in range(4)] + [[15] + list(range(15))] * 4
    if kind == "nonex":
        return [[(x + 8 * g) & 15 for x in range(16)] for g in range(2) for r in range(4)]
    if kind == "lead1h":
        return [[(x + 8 * g) & 15 for x in [y for y in lead(r, 4, 1) if y < 8] + list(range(8, 16))] for g in range(2) for r in range(4)]
    if kind == "rot4h":
        return [[(x + 8 * g) & 15 for x in [(s & ~3) + ((s + r) & 3) for s in range(8)] + list(range(8, 16))] for g in range(2) for r in range(4)]
    if kind == "rot4l":
        return [[(x + 8 * g) & 15 for x in [(s & ~3) + ((s + r) & 3) for s in range(8)] + [y for y in lead(r, 4, 1) if y >= 8]] for g in range(2) for r in range(4)]
    if kind == "lead1y":
        return [[x ^ (4 * g) for x in lead(r, 4, 1)] for g in range(2) for r in range(4)]
    if kind == "lead1z":
        return [[x ^ (2 * g) for x in lead(r, 4, 1)] for g in range(2) for r in range(4)]
    if kind == "lead1r":
        return [[15 - x if g else x for x in lead(r, 4, 1)] for g in range(2) for r in range(4)]
    if kind == "lead2x":
        return [[(x + 8 * g) & 15 for x in lead(r, 4, 2)] for g in range(2) for r in range(4)]
    if kind == "lead21x":
        return [[(x + 8 * g) & 15 for x in lead(r & 1, 2, 1)] for g in range(2) for r in range(4)]
    if kind == "rot4x":
        return [[(((s & ~3) + ((s + r) & 3)) + 8 * g) & 15 for s in range(16)] for g in range(2) for r in range(4)]
    if kind == "rot4s":
        a = [[(s & ~3) + ((s + r) & 3) for s in range(16)] for r in range(4)]
        b_ = [[(s + r) & 1 for s in range(2)] + [2 + (s & ~3) + ((s + r) & 3) for s in range(12)] + [14 + ((s + r) & 1) for s in range(2)] for r in range(4)]
        return a + b_


def gen(stamps=False, **O):
    O = dict(BEST, **O)
    b = B()
    e = b.e
    nst = [0]

    def stamp(last=False):
        if stamps and (stamps != 2 or last):
            i = sST + nst[0]
            i += 2 * (i >= sRT)
            assert i < 98
            nst[0] += 1
            b.wait_all(lg=True)
            e("s_memtime s[98:99]")
            e("s_waitcnt lgkmcnt(0)")
            e(f"s_mov_b32 s{i}, s98")

    SIG = [65536, 131072, 94208]
    sig = lambda s: SIG[s % 3]
    slow = []

    if stamps:
        e("s_memrealtime s[100:101]")
        e(f"s_memtime s[{sST}:{sST + 1}]")
        nst[0] += 1
    e(f"s_load_dwordx8 s[{sK}:{sK + 7}], s[0:1], 0")
    e(f"s_load_dwordx4 s[{sK + 8}:{sK + 11}], s[0:1], 32")
    e(f"s_load_dwordx2 s[{sF}:{sF + 1}], s[0:1], 48")
    e("s_cmp_ge_u32 s2, 256")
    e("s_cbranch_scc1 L_end")
    e("v_lshrrev_b32 v2, 6, v0")
    e("v_and_b32 v0, 63, v0")
    e(f"v_readfirstlane_b32 s{sWV}, v2")
    e("s_and_b32 s41, s2, 1")
    e("s_bfe_u32 s42, s2, 0x20001")
    e("s_bfe_u32 s43, s2, 0x20003")
    e("s_lshr_b32 s44, s2, 5")
    e("s_xor_b32 s45, s41, s42")
    e("s_and_b32 s45, s45, 1")
    e("s_lshl2_add_u32 s45, s45, s43")
    sMT, sJ, sMB, sNB = 45, 46, 47, 3
    e("v_lshrrev_b32 v25, 3, v0")
    e("v_lshrrev_b32 v26, 4, v0")
    e("v_and_b32 v27, 7, v0")
    e("v_xor_b32 v23, v27, v26")
    e("v_lshlrev_b32 v25, 11, v25")
    e(f"v_lshl_add_u32 v{vXD}, v23, 4, v25")
    e(f"v_xor_b32 v{vXD + 1}, 64, v{vXD}")
    perms = stage_orders(O["perm"])
    assert len(perms) == 8
    rsel = O.get("rsel", 0)
    if rsel == 0:
        e(f"s_add_u32 s{sTI}, s43, s44")
    elif rsel == 1:
        e(f"s_lshr_b32 s{sTI}, s44, 2")
        e(f"s_add_u32 s{sTI}, s{sTI}, s43")
        e(f"s_and_b32 s{sA}, s42, 2")
        e(f"s_add_u32 s{sTI}, s{sTI}, s{sA}")
    elif rsel == 2:
        e(f"s_lshr_b32 s{sTI}, s44, 1")
        e(f"s_add_u32 s{sTI}, s{sTI}, s43")
    elif rsel == 3:
        e(f"s_add_u32 s{sTI}, s44, 1")
        e(f"s_lshr_b32 s{sTI}, s{sTI}, 1")
        e(f"s_add_u32 s{sTI}, s{sTI}, s43")
    e(f"s_and_b32 s{sTI}, s{sTI}, 3")
    e(f"s_lshl2_add_u32 s{sTI}, s41, s{sTI}")
    e(f"s_lshl_b32 s{sA}, s{sTI}, 2")
    e(f"s_lshr_b32 s{sWO}, {sum(pm[0] << (4 * k) for k, pm in enumerate(perms)):#x}, s{sA}")
    e(f"s_and_b32 s{sWO}, s{sWO}, 15")
    e(f"s_lshl_b32 s{sXO_}, s{sWO}, 7")
    e(f"s_lshl2_add_u32 s{sB_}, s{sMT}, s{sWV}")
    e(f"s_lshl_b32 s{sB_}, s{sB_}, 17")
    e(f"s_mov_b32 s{sX + 2}, {63 * 2048 + 128}")
    e(f"s_mov_b32 s{sX + 3}, 0x20000")
    e(f"s_lshl_b32 s{sM0X}, s{sWV}, 14")
    e(f"s_mov_b32 m0, s{sM0X}")
    for q in range(4):
        e(f"s_mov_b32 s{sXQ + q}, {q * 16384 - (q & 3) * 1024}")
    nib = lambda d, s_: f"s_bfe_u32 s{d}, s{sPM + (s_ >> 3)}, {0x40000 + 4 * (s_ & 7):#x}"

    def w_off(q, base):
        if q:
            e(f"v_add_u32 v22, {64 * 4682}, v22")
        e("v_lshrrev_b32 v23, 16, v22")
        e("v_and_b32 v24, 3, v23")
        e(f"v_mad_u32_u24 v23, v23, s{sHA}, v{base}")
        e(f"v_mad_i32_i24 v{vWD + q}, v24, s{sHB}, v23")

    def w_setup1():
        e(f"v_lshlrev_b32 v{vL16}, 4, v0")
        e("v_mul_u32_u24 v22, 4682, v0")
        e(f"s_movk_i32 s{sHA}, 14112")
        e(f"s_movk_i32 s{sHB}, -7168")
        for q in range(4):
            w_off(q, vL16)
        e("s_lshl3_add_u32 s46, s42, s44")
        e(f"s_mul_i32 s{sWO}, s{sWO}, {WST}")
        e(f"s_lshr_b32 s{sA}, s{sWV}, 1")
        e(f"s_mul_i32 s{sA}, s{sA}, {4 * 7168}")
        e(f"s_mul_i32 s{sHLA}, s{sJ}, 224")
        e(f"s_add_u32 s{sA}, s{sA}, s{sHLA}")
        e(f"s_mov_b32 s{sW + 2}, {15 * WST + 60 * 7168}")
        e(f"s_mov_b32 s{sW + 3}, 0x20000")
        e(f"s_mul_i32 s{sM0W}, s{sWV}, 7168")

    def w_setup2():
        e(f"s_bitcmp1_b32 s{sWV}, 0")
        e(f"s_cselect_b32 s{sW}, s{sK + 4}, s{sK + 2}")
        e(f"s_cselect_b32 s{sW + 1}, s{sK + 5}, s{sK + 3}")
        e(f"s_add_u32 s{sW}, s{sW}, s{sA}")
        e(f"s_addc_u32 s{sW + 1}, s{sW + 1}, 0")

    def code_touch():
        e("; ---- bring this kernel's code into L2 ahead of the instruction fetch (4 lines per wave)")
        e("s_getpc_b64 s[4:5]")
        e("L_pc:")
        e(f"s_lshr_b32 s{sHLB}, s2, 3")
        e(f"s_lshl2_add_u32 s{sHLB}, s{sHLB}, s{sWV}")
        e(f"s_lshl_b32 s{sHLB}, s{sHLB}, 9")
        e(f"v_min_u32 v{vOUT}, 3, v0")
        e(f"v_lshl_add_u32 v{vOUT}, v{vOUT}, 7, s{sHLB}")
        e(f"v_min_u32 v{vOUT}, L_end-L_pc, v{vOUT}")
        b.vm(f"global_load_dword v{vFV}, v{vOUT}, s[4:5]")
    fast = O.get("fast", 1)
    if fast in (0, 2):
        code_touch()
    if fast == 0:
        w_setup1()
    e("s_waitcnt lgkmcnt(0)")
    stamp()

    m0_state = [(sM0X, 0)]

    def m0_ops(sreg, off):
        if m0_state[0] == (sreg, off):
            return []
        m0_state[0] = (sreg, off)
        return [[f"s_add_u32 m0, s{sreg}, {off}" if off else f"s_mov_b32 m0, s{sreg}"]]

    def pre_w(s, q):
        g = m0_ops(sM0W, sig(s) + (q >> 2) * 4096)
        if q == 0 and s:
            g += [[nib(sWO, s)], [f"s_mul_i32 s{sWO}, s{sWO}, {WST}"]]
        return g

    def dma_w(s, q):
        if O.get("now") and s >= 3:
            b.vm_tag["W", s, q] = 0
            return
        b.vm(f"buffer_load_dwordx4 v{vWD + q}, {R('s', sW)}, s{sWO} offen offset:{(q & 3) * 1024} {O.get('wfl', '')} lds", ("W", s, q))

    def pre_x(s, q):
        g = m0_ops(sM0X, (2 * s + (q >> 2)) % 3 * 4096)
        if q == 0:
            if s:
                g += [[nib(sXO_, s)], [f"s_lshl_b32 s{sXO_}, s{sXO_}, 7"]]
            g.append([f"s_add_u32 s{sX}, s{sX0}, s{sXO_}", f"s_addc_u32 s{sX + 1}, s{sX0 + 1}, 0"])
        return g

    def dma_x(s, q):
        if O.get("nox") and s >= 2:
            b.vm_tag["X", s, q] = 0
            return
        b.vm(f"buffer_load_dwordx4 v{vXD + (q & 1)}, {R('s', sX)}, s{sXQ + q} offen offset:{(q & 3) * 1024} {O.get('xfl', '')} lds", ("X", s, q))

    def now(groups):
        for g in groups:
            for x in g:
                e(x)

    e(f"s_add_u32 s{sX0}, s{sK}, s{sB_}")
    e(f"s_addc_u32 s{sX0 + 1}, s{sK + 1}, 0")
    for q in range(4):
        now(pre_x(0, q))
        dma_x(0, q)
    if fast == 1:
        code_touch()
    if fast:
        w_setup1()
    w_setup2()
    for q in range(4):
        now(pre_w(0, q))
        dma_w(0, q)
    for q in range(4, 8):
        e(f"s_mov_b32 s{sXQ + q}, {q * 16384 - (q & 3) * 1024}")
    nx0 = 8
    for q in range(4, 8):
        now(pre_x(0, q))
        dma_x(0, q)
    for r_, pm in enumerate(perms):
        assert sorted(pm) == list(range(16))
        lo = sum(v << (4 * k) for k, v in enumerate(pm[:8]))
        hi = sum(v << (4 * k) for k, v in enumerate(pm[8:]))
        if r_ == 0:
            e(f"s_mov_b32 s{sPM}, {lo:#x}")
            e(f"s_mov_b32 s{sPM + 1}, {hi:#x}")
        else:
            e(f"s_cmp_eq_u32 s{sTI}, {r_}")
            e(f"s_cselect_b32 s{sPM}, {lo:#x}, s{sPM}")
            e(f"s_cselect_b32 s{sPM + 1}, {hi:#x}, s{sPM + 1}")
    e(f"v_add_u32 v28, 4096, v{vL16}")
    for q in range(4, 7):
        w_off(q, 28)
    pro_items = [("W", 0, q) for q in range(4, 7)] + [("X", 1, q) for q in range(4)] + [("W", 1, q) for q in range(7)]
    npro = O.get("npro", 3)

    map2 = O.get("map2", 3)
    if map2 == 0:
        e("s_lshl2_add_u32 s47, s42, s43")
        e(f"s_mov_b32 s{sA}, s44")
    elif map2 == 1:
        e(f"s_lshr_b32 s{sA}, s42, 1")
        e(f"s_lshl3_add_u32 s47, s{sA}, s44")
        e(f"s_and_b32 s{sA}, s42, 1")
        e(f"s_lshl2_add_u32 s{sA}, s{sA}, s43")
    elif map2 in (2, 3):
        if map2 == 2:
            e(f"s_and_b32 s{sA}, s2, 3")
            e(f"s_lshl2_add_u32 s47, s{sA}, s43")
            e(f"s_mov_b32 s{sA}, s44")
        else:
            e("s_lshl3_add_u32 s47, s41, s44")
            e(f"s_and_b32 s{sA}, s42, 1")
            e(f"s_lshl2_add_u32 s{sA}, s{sA}, s43")
        e("s_lshr_b32 s41, s42, 1")
        e("s_xor_b32 s41, s41, 1")
    else:
        e("s_xor_b32 s41, s41, 1")
        if map2 == 4:
            e(f"s_and_b32 s{sA}, s42, 1")
            e(f"s_lshl1_add_u32 s{sA}, s41, s{sA}")
            e(f"s_lshl2_add_u32 s47, s{sA}, s43")
            e(f"s_mov_b32 s{sA}, s44")
        else:
            e("s_lshl3_add_u32 s47, s41, s44")
            e(f"s_and_b32 s{sA}, s42, 1")
            e(f"s_lshl2_add_u32 s{sA}, s{sA}, s43")
        e("s_lshr_b32 s41, s42, 1")
    e(f"s_and_b32 s{sB_}, s{sWV}, 1")
    e(f"s_lshl1_add_u32 s3, s{sA}, s{sB_}")
    e(f"s_lshr_b32 s{sA}, s{sWV}, 1")
    e(f"s_lshl1_add_u32 s{sSPIN}, s41, s{sA}")
    e("s_lshr_b32 s42, s46, 3")
    e("s_and_b32 s44, s46, 7")
    e(f"s_lshl_b32 s{sM0H}, s{sA}, 14")
    if O.get("dx"):
        m_ = {1: f"s_and_b32 s{sRT}, s47, 3", 2: f"s_bfe_u32 s{sRT}, s47, 0x20002", 3: f"s_lshr_b32 s{sRT}, s47, 3"}[O["dx"]]
        e(m_)
        for i in range(4):
            e(f"s_xor_b32 s{sTS + i}, s{sRT}, {i}")
            e(f"s_mul_i32 s{sTS + i}, s{sTS + i}, {112 * 2048}")
        e(f"s_xor_b32 s{sHLA}, s{sRT}, s{sB_}")
        e(f"s_and_b32 s{sHLA}, s{sHLA}, 1")
        e(f"s_lshl_b32 s{sHLA}, s{sHLA}, 10")
        e(f"v_add_u32 v29, s{sHLA}, v{vL16}")
        e(f"s_and_b32 s{sRT}, s{sRT}, 2")
        e(f"s_lshl_b32 s{sRT}, s{sRT}, 13")
        e(f"s_xor_b32 s{sRT + 1}, s{sRT}, 16384")
    e(f"s_lshl_b32 s{sB_}, s{sB_}, 10")
    if not O.get("dx"):
        e(f"v_add_u32 v29, s{sB_}, v{vL16}")
    e(f"v_add_u32 v28, s{sM0H}, v{vL16}")
    e(f"s_add_u32 s{sM0H}, s{sM0H}, s{sB_}")
    sWQ = sSPIN
    e("v_lshlrev_b32 v23, 1, v26")
    e("v_xor_b32 v23, v27, v23")
    e(f"v_lshl_add_u32 v{vDD}, v23, 4, v25")
    e("v_and_b32 v22, 15, v0")
    e("v_lshrrev_b32 v24, 1, v22")
    e("v_xor_b32 v24, v24, v26")
    e("v_lshlrev_b32 v24, 4, v24")
    e("v_lshl_add_u32 v24, v22, 7, v24")
    e(f"v_add_u32 v{vXR}, s{sM0X}, v24")
    e(f"v_xor_b32 v{vXR + 1}, 64, v{vXR}")
    e(f"v_lshlrev_b32 v{vFP}, 2, v22")
    e("v_lshrrev_b32 v24, 2, v0")
    e("v_and_b32 v25, 3, v0")
    e("v_mul_u32_u24 v26, 224, v24")
    e("v_lshl_add_u32 v26, v25, 3, v26")
    e(f"v_add_u32 v{vWR}, 65536, v26")
    e(f"v_add_u32 v{vWR2}, 131072, v26")
    e("v_lshlrev_b32 v26, 7, v24")
    e("v_lshl_add_u32 v26, v25, 3, v26")
    e(f"v_add_u32 v26, s{sM0X}, v26")
    e("v_bfe_u32 v27, v0, 3, 2")
    e(f"v_lshl_add_u32 v{vDR}, v27, 5, v26")
    for nb in range(1, 4):
        e(f"v_xor_b32 v{vDR + nb}, {32 * nb}, v{vDR}")
    e("v_lshrrev_b32 v24, 5, v0")
    e("v_and_b32 v25, 31, v0")
    e("v_lshlrev_b32 v25, 4, v25")
    e(f"v_lshl_add_u32 v{vHL}, v24, 10, v25")
    e(f"s_mov_b32 s{sF + 2}, 8192")
    e(f"s_mov_b32 s{sF + 3}, 0x20000")
    e(f"s_lshr_b32 s{sA}, s{sWV}, 1")
    e(f"s_lshl1_add_u32 s{sA}, s{sMT}, s{sA}")
    e(f"s_lshl2_add_u32 s{sB_}, s{sA}, s42")
    e(f"s_lshl_b32 s{sFP}, s{sB_}, 7")
    e(f"s_and_b32 s{sHA}, s{sWV}, 1")
    e(f"s_lshl1_add_u32 s{sHB}, s44, s{sHA}")
    e(f"s_lshl2_add_u32 s{sFP}, s{sHB}, s{sFP}")
    e("s_cmp_eq_u32 s2, 0")
    e("s_cbranch_scc1 L_clear")
    e("L_cleared:")
    slow.append("L_clear:")
    slow.extend(f"v_mov_b32 v{24 + x}, 0" for x in range(4))
    slow.extend([f"s_lshl_b32 s{sA}, s{sWV}, 11",
                 f"buffer_store_dwordx4 v[24:27], v{vL16}, {R('s', sF)}, s{sA} offen sc1",
                 f"buffer_store_dwordx4 v[24:27], v{vL16}, {R('s', sF)}, s{sA} offen offset:1024 sc1",
                 "s_branch L_cleared"])
    if O.get("wt"):
        e(f"s_and_b32 s{sA}, s46, 1")
        e(f"s_and_b32 s{sB_}, s45, 3")
        e(f"s_lshl2_add_u32 s{sB_}, s{sA}, s{sB_}")
        e(f"s_lshl_b32 s{sB_}, s{sB_}, 2")
        e(f"s_lshr_b32 s{sHLA}, s{sWV}, 1")
        e(f"s_add_u32 s{sB_}, s{sB_}, s{sHLA}")
        e(f"s_mul_i32 s{sB_}, s{sB_}, {4 * 7168}")
        e(f"s_mul_i32 s{sA}, s{sA}, 672")
        e(f"s_sub_u32 s{sB_}, s{sB_}, s{sA}")
        e(f"s_add_u32 s{sB_}, s{sB_}, 256")
        e("v_min_u32 v24, 23, v0")
        e("v_mul_u32_u24 v25, 0x5556, v24")
        e("v_lshrrev_b32 v25, 16, v25")
        e(f"v_mul_u32_u24 v26, {7168 - 384}, v25")
        e("v_lshl_add_u32 v26, v24, 7, v26")
        e(f"v_add_u32 v26, s{sB_}, v26")
        e(f"s_add_u32 s{sA}, s46, 1")
        e(f"s_bitcmp1_b32 s{sA}, 1")
        e(f"s_cselect_b32 s{sA}, 0, -1")
        e(f"v_and_b32 v26, s{sA}, v26")
        e(f"s_and_b32 s{sTS + 1}, s{sA}, {2 * WST}")
        e(f"s_mul_i32 s{sTS + 2}, s{sGR}, {(16 - O['wt']) // 2}")
    if O["cpos"]:
        e("s_mov_b32 s46, s4")
        e("s_mov_b32 s45, s5")
    if O.get("touchd", 1):
        e(f"s_lshl2_add_u32 s{sA}, s2, s{sWV}")
        if O.get("tall"):
            e(f"s_mul_i32 s{sA}, s{sA}, {56 * 128}")
        elif O.get("tlite"):
            e(f"s_add_u32 s{sB_}, s44, 1")
            e(f"s_bfe_u32 s{sB_}, s{sB_}, 0x10001")
            e(f"s_mov_b32 s{sHLA}, s{sB_}")
            e(f"s_lshr_b32 s{sB_}, s2, 6")
            e(f"s_and_b32 s{sA}, s{sA}, 127")
            e(f"s_lshl_b32 s{sB_}, s{sB_}, 7")
            e(f"s_add_u32 s{sA}, s{sA}, s{sB_}")
            e(f"s_lshr_b32 s{sB_}, s{sA}, 4")
            e(f"s_mul_i32 s{sB_}, s{sB_}, 28")
            e(f"s_and_b32 s{sA}, s{sA}, 15")
            e(f"s_add_u32 s{sA}, s{sA}, s{sB_}")
            e(f"s_add_u32 s{sA}, s{sA}, 12")
            e(f"s_lshl_b32 s{sA}, s{sA}, 13")
        else:
            e(f"s_lshr_b32 s{sB_}, s{sA}, 5")
            e(f"s_mul_i32 s{sB_}, s{sB_}, 56")
            e(f"s_and_b32 s{sA}, s{sA}, 31")
            e(f"s_add_u32 s{sA}, s{sA}, s{sB_}")
            e(f"s_add_u32 s{sA}, s{sA}, 24")
            e(f"s_lshl_b32 s{sA}, s{sA}, 12")
        TL = (56 if O.get("tall") else 64 if O.get("tlite") else 32) // len(O.get("tdpos", TDPOS))
        e(f"v_min_u32 v22, {TL - 1}, v0")
        if O.get("tlite"):
            e(f"s_cmp_eq_u32 s{sHLA}, 0")
            e(f"s_cselect_b32 s{sA}, s{sA}, 0")
            e(f"s_cselect_b32 s{sTS}, {TL * 128}, 0")
            e(f"s_cselect_b32 s{sB_}, -1, 0")
            e(f"v_and_b32 v22, s{sB_}, v22")
        e(f"v_lshl_add_u32 v22, v22, 7, s{sA}")
        e(f"s_mov_b32 s4, s{sK + 6}")
        e(f"s_mov_b32 s5, s{sK + 7}")
    e(f"s_mul_i32 s{sA}, s{sWQ}, {896 * 2048}")
    e(f"s_lshl_b32 s{sB_}, s{sNB}, 7")
    e(f"s_add_u32 s{sA}, s{sA}, s{sB_}")
    e(f"s_add_u32 s{sD}, s{sK + 6}, s{sA}")
    e(f"s_addc_u32 s{sD + 1}, s{sK + 7}, 0")
    e(f"s_mov_b32 s{sD + 2}, {895 * 2048 + 128}")
    e(f"s_mov_b32 s{sD + 3}, 0x20000")
    e(f"s_lshr_b32 s{sA}, s{sFP}, 7")
    e(f"s_mul_i32 s{sA}, s{sA}, {28 * 8192}")
    e(f"s_add_u32 s{sA}, s{sA}, {HOFF}")
    e(f"s_add_u32 s{sHS}, s{sF}, s{sA}")
    e(f"s_addc_u32 s{sHS + 1}, s{sF + 1}, 0")
    e(f"s_mov_b32 s{sHS + 2}, {28 * 8192}")
    e(f"s_mov_b32 s{sHS + 3}, 0x20000")
    e(f"s_lshl2_add_u32 s{sA}, s{sMB}, s{sWQ}")
    e(f"s_lshl_b32 s{sFC}, s{sA}, 7")
    e(f"s_mul_i32 s{sA}, s{sA}, {28 * 8192}")
    e(f"s_add_u32 s{sA}, s{sA}, {HOFF - (2048 if O.get('dx') else 0)}")
    e(f"s_add_u32 s{sHL}, s{sF}, s{sA}")
    e(f"s_addc_u32 s{sHL + 1}, s{sF + 1}, 0")
    e(f"s_mov_b32 s{sHL + 2}, {28 * 8192 + 2048}")
    e(f"s_mov_b32 s{sHL + 3}, 0x20000")
    e(f"s_lshl_b32 s{sA}, s{sHA}, 1")
    e(f"s_xor_b32 s{sA}, s{sA}, s42")
    e(f"s_xor_b32 s{sA}, s{sA}, 3")
    e(f"s_xor_b32 s{sB_}, s{sA}, 1")
    e(f"s_lshl_b32 s{sA}, s{sA}, 11")
    e(f"s_lshl_b32 s{sB_}, s{sB_}, 11")
    e(f"s_add_u32 s{sHA}, s44, 4")
    e(f"s_lshl_b32 s{sHA}, s{sHA}, 13")
    e(f"s_add_u32 s{sHB}, s{sHA}, s{sB_}")
    e(f"s_add_u32 s{sHA}, s{sHA}, s{sA}")
    e(f"s_lshr_b32 s{sHLA}, s44, 1")
    e(f"s_lshl_b32 s{sHLA}, s{sHLA}, 13")
    e(f"s_and_b32 s{sHLB}, s44, 1")
    e(f"s_lshl_b32 s{sHLB}, s{sHLB}, 9")
    e(f"s_add_u32 s{sHLA}, s{sHLA}, s{sHLB}")
    e(f"s_add_u32 s{sHLB}, s{sHLA}, s{sB_}")
    e(f"s_add_u32 s{sHLA}, s{sHLA}, s{sA}")
    e(f"s_lshl2_add_u32 s{sA}, s{sMB}, s{sWQ}")
    e(f"s_lshl_b32 s{sA}, s{sA}, 16")
    e(f"s_lshl_b32 s{sB_}, s{sNB}, 7")
    e(f"s_add_u32 s{sA}, s{sA}, s{sB_}")
    e(f"s_add_u32 s{sO}, s{sK + 8}, s{sA}")
    e(f"s_addc_u32 s{sO + 1}, s{sK + 9}, 0")
    e(f"s_mov_b32 s{sO + 2}, {31 * 2048 + 128}")
    e(f"s_mov_b32 s{sO + 3}, 0x20000")
    e(f"s_mov_b32 s{sG}, s{sK + 10}")
    e(f"s_mov_b32 s{sG + 1}, s{sK + 11}")
    e(f"s_mov_b32 s{sG + 2}, 256")
    e(f"s_mov_b32 s{sG + 3}, 0x20000")
    e(f"s_or_b32 s{sCP}, s2, s{sWV}")
    e(f"s_mov_b32 s{sNL2E}, 0xbfb8aa3b")
    if O["cpos"]:
        e("s_mov_b32 s47, s45")
    e(f"s_lshl2_add_u32 s{sXFO}, s{sNB}, s{sFC}")
    e(f"s_add_u32 s{sXFO}, s{sXFO}, 64")
    e(f"s_xor_b32 s{sXFI}, s{sXFO}, 256")
    e(f"s_lshr_b32 s{sA}, s{sFC}, 3")
    e(f"s_add_u32 s{sA}, s{sA}, s{sNB}")
    e(f"s_lshl_b32 s{sXO}, s{sA}, 13")
    e(f"s_xor_b32 s{sXI}, s{sXO}, {32 << 13}")

    def warm():
        e("; ---- instruction prefetch stops at 4 KiB boundaries: while the first loads are under way every wave follows a short chain")
        e("; ---- of branches (L_padN, taken only while vcc != 0) through the first line of the code pages")
        e("s_mov_b64 vcc, 1")
        for w_ in range(3):
            e(f"s_cmp_eq_u32 s{sWV}, {w_}")
            e(f"s_cbranch_scc1 L_pad{w_}")
        e("s_branch L_pad3")
        e("L_warm:")
        e("s_mov_b64 vcc, 0")
    rest = [("X", 0, q) for q in range(nx0, 8)] + pro_items[:npro]
    wat = min(O.get("wat", 0), len(rest))
    for n_, (k, s_, q) in enumerate(rest + [(None, 0, 0)]):
        if n_ == wat and O.get("pads", 1):
            warm()
        if k:
            now((pre_w if k == "W" else pre_x)(s_, q))
            (dma_w if k == "W" else dma_x)(s_, q)
    if O.get("pads", 1):
        e("s_branch L_main")
        e("@SLOW@")
        e(".p2align 12")
        e("L_main:")

    ops = []

    def add(kind, fn, pos, dead=None, deps=()):
        if isinstance(fn, (list, tuple)):
            g = list(fn)
            fn = lambda g=g: [e(x) for x in g]
        o = Op(kind, fn, pos, pos + 12 if dead is None else dead, [d for d in deps if d is not None], len(ops))
        ops.append(o)
        return o

    slots = []
    valu = defaultdict(list)
    NM = 28 * 56
    NT = NM + 224
    NE = 0
    N2 = NT + NE
    xset = lambda t: t & 3
    WR = (64, 68, 72, 76, 80, 84, 248, 252)
    wreg = lambda F: WR[F % 8]

    def rd_w(F, t, i, half):
        s, p, gu, blk = t >> 1, t & 1, i & 1, i >> 1
        off = sig(s) + (gu + 2 * half) * 7168 + p * 3584 + blk * 32
        v, off = (vWR, off - 65536) if off < 131072 else (vWR2, off - 131072)
        r = wreg(F) + 2 * half
        if O.get("skipw") and half == 0 and 14 <= F < 28 * 14:
            return lambda: b.lg_tag.__setitem__(("wf", F, half), 0)
        return lambda: b.lg(f"ds_read_b64_tr_b16 {R('a', r, 2)}, v{v} offset:{off}", ("wf", F, half))

    def rd_x(t, jm):
        s, p = t >> 1, t & 1
        return lambda: b.lg(f"ds_read_b128 {R('a', aXF + 16 * xset(t) + 4 * jm)}, v{vXR + p} offset:{(2 * s + (jm >> 1)) % 3 * 4096 + (jm & 1) * 2048}", ("xf", t, jm))

    beta = lambda t: 56 * t + O.get("beta", 42)
    nb2 = O.get("nb2", 4)
    groups = []
    for s in range(14):
        if 2 * s < nb2:
            groups += [[(t, i)] for t in (2 * s, 2 * s + 1) for i in range(14)]
        else:
            groups += [[(2 * s, i), (2 * s + 1, i)] for i in range(14)]
    groups += [[(t, gu), (t + 1, gu)] for t in (28, 30) for gu in range(2)]
    groups += [[(28 + tt, i) for tt in range(4)] for i in range(2, 14)]
    frs = [f for g in groups for f in g]
    fuse, luse, adone = {}, {}, {}
    started = set()
    F0 = nchain = 0
    for gi, g in enumerate(groups):
        for jm in (range(3, -1, -1) if gi & 1 else range(4)):
            for k in (range(len(g) - 1, -1, -1) if nchain & 1 else range(len(g))):
                t, i = g[k]
                F = F0 + k
                fuse.setdefault(F, len(slots))
                luse[F] = len(slots)
                d = R("v", acc1(i >> 1, i & 1, jm))
                c = d if (i, jm) in started else "0"
                started.add((i, jm))
                adone[i, jm] = len(slots)
                slots.append((f"v_mfma_f32_16x16x32_bf16 {d}, {R('a', wreg(F))}, {R('a', aXF + 16 * xset(t) + 4 * jm)}, {c}",
                              [("wf", F, 1), ("xf", t, jm)], []))
            nchain += 1
        F0 += len(g)
    pro = []
    bar = {}
    prev = None
    barw = {}
    LA = O.get("la", 20)
    pos = -100
    gate = None
    for F, (t, i) in enumerate(frs):
        pos = max(pos + 2, fuse[F] - LA, luse.get(F - 8, -100) + 1, gate.pos + 1 if gate else -100)
        for half in range(2):
            if fuse[F] < 12:
                pro.append(rd_w(F, t, i, half))
            else:
                prev = add("D", rd_w(F, t, i, half), max(pos, 0) + half, fuse[F] - 4, [prev, gate])
        gate = None
        if F < 28 * 14 and F % 14 == 13 and (F // 14 & 1 or F // 14 < nb2):
            t = F // 14
            s, p = (t + 1) >> 1, (t + 1) & 1
            need = [("W", s, q) for q in (range(4) if p == 0 and t + 1 < nb2 else range(7))]
            if t == 27:
                need = [("W", s2, q) for s2 in (14, 15) for q in range(7)]
            assert pos + 5 <= beta(t), (t, pos)
            barw[t] = add("S", lambda need=need, F=F: b.wait(vm=need, lg=[("wf", F, 1)]), beta(t), beta(t) + 1, [prev])
            gate = bar[t] = add("S", ["s_barrier" if not O.get("nobar") or t < 4 or t == 27 else "s_nop 0"], beta(t) + 1, beta(t) + 2, [barw[t]])
    xpos = {}
    xrd = {}
    xw = {}
    for t in range(1 if nb2 else 2, 32):
        for jm in range(4):
            s, a = t >> 1, jm >> 1
            k = 2 * (jm & 1) + (t & 1)
            if t == 1:
                pos = 2 + 3 * jm
            elif s == 1:
                pos = 56 + (18, 34)[a] + k
            elif s == 15:
                pos = NM + 4 * a + k
            else:
                pos = 56 * (2 * (s - 1) + a) + 34 + k
            xpos[t, jm] = pos
            if t > 1 and (s, a) not in xw:
                xw[s, a] = add("S", lambda s=s, a=a: b.wait(vm=[("X", s, 4 * a + 3)]), pos - 1, pos + 4)
            xrd[t, jm] = add("D", rd_x(t, jm), pos, pos + 5, [xw.get((s, a))])
    xlast = lambda s, a: max(((t, jm) for t in (2 * s, 2 * s + 1) for jm in (2 * a, 2 * a + 1) if (t, jm) in xpos), key=lambda x: xpos[x])
    xall = lambda s, a: [(t, jm) for t in (2 * s, 2 * s + 1) for jm in (2 * a, 2 * a + 1)]

    usets = ([("a", aDF + 16 * i) for i in range(10)] + [("v", r) for r in (48, 32, 80, 96, 64, 144, 160, 176, 128, 112)])
    NS = len(usets)
    ureg = lambda u: usets[u % NS]
    unit_lds = lambda slot: slot * 4096

    def unit_row(u, q):
        if u < 4:
            return 112 * (2 * u + (q & 1)) + 8 * (q >> 1)
        return 112 * ((u - 4) & 7) + 16 + 32 * ((u - 4) >> 3) + 8 * q

    def pre_d(u, sl, q):
        if O.get("dx"):
            c_ = unit_row(u & ~3, q) * 2048 - q * 1024
            return m0_ops(sM0X, unit_lds(sl)) + [[f"{'s_lshl1_add_u32' if u < 4 else 's_add_u32'} s{sA}, s{sTS + (u & 3)}, {c_}"]]
        return m0_ops(sM0X, unit_lds(sl)) + [[f"s_mov_b32 s{sA}, {unit_row(u, q) * 2048 - q * 1024}"]]

    def dma_d(u, q):
        if u >= O.get("nod", 99):
            b.vm_tag["D", u, q] = 0
            return
        b.vm(f"buffer_load_dwordx4 v{vDD}, {R('s', sD)}, s{sA} offen offset:{q * 1024} {O.get('dfl', '')} lds", ("D", u, q))

    def rd_d(u, slot, nb, half):
        off = unit_lds(slot) + half * 2048
        p_, r_ = ureg(u)
        return lambda: b.lg(f"ds_read_b64_tr_b16 {R(p_, r_ + 4 * nb + 2 * half, 2)}, v{vDR + nb} offset:{off}", ("df", u, nb, half))

    chain = [None]

    def add_dma(groups, fn, pos, dead, deps=(), sdeps=()):
        deps = list(deps)
        p = chain[0]
        for gi, g in enumerate(groups):
            p = add("S", g, pos - len(groups) + gi - O.get("sear", 1), dead - 1, [p] + list(sdeps))
            p.setup = True
        chain[0] = add("V", fn, pos, dead, [p] + deps)
        return chain[0]

    NPF = O.get("npf", 10)
    done = set(pro_items[:npro]) | {("W", 0, q) for q in range(4)} | {("X", 0, q) for q in range(8)}
    queue = {"W": [("W", s, q) for s in range(16) for q in range(7)], "X": [("X", s, q) for s in range(16) for q in range(8)],
             "D": [("D", u, q) for u in range(NPF) for q in range(4)]}
    for k in queue:
        queue[k] = [it for it in queue[k] if it not in done]
    gm, gh = O.get("gm", 8.0), O.get("gh", 5.0)
    d0, dper, dlat = O.get("d0", 150), O.get("dper", 138), O.get("dlat", 105)
    dlast = {}
    dfree = [0]

    def window(k, s, q):
        if k == "W":
            tb = 2 * (s - 3) + (q >= 3)
            if s >= 3 and tb not in bar:
                tb += 1
            tl = min(2 * s - 1 + (q >= 4), 27)
            if tl not in bar:
                tl -= 1
            return (beta(tb) + 2 if s >= 3 else 0), beta(tl), tb, tl
        if k == "X":
            hh = 2 * s + (q >> 2) - 3
            return (xpos[xlast(hh >> 1, hh & 1)] + 7 if hh >= (0 if nb2 else 2) else 0), xw[s, q >> 2].pos, hh, None
        early = max(O["dpos"][s] if "dpos" in O else d0 + dper * s, dfree[0])
        return early, early + O.get("dprio", 60), None, None
    fpos = 1.0
    lastk = None
    while any(queue.values()):
        heads = [queue[k][0] for k in queue if queue[k]]
        avail = [it for it in heads if window(*it)[0] <= fpos]
        if not avail:
            fpos = min(window(*it)[0] for it in heads)
            continue
        k, s, q = min(avail, key=lambda it: window(*it)[1] + (O.get("alt", 0) if it[0] == lastk else 0))
        lastk = k
        queue[k].pop(0)
        early, lim, a1, a2 = window(k, s, q)
        pos = int(fpos)
        assert pos + 2 < lim or k == "D", (k, s, q, pos, lim)
        if O.get("verbose"):
            print(k, s, q, "early", early, "issue", pos, "lim", lim, "ahead", lim - pos)
        deps = []
        if k == "W":
            o = add_dma(pre_w(s, q), lambda s=s, q=q: dma_w(s, q), pos, pos + 3, [bar[a1]] if s >= 3 else [])
            barw[a2].deps.append(o)
        elif k == "X":
            if a1 >= 0 and q & 3 == 0:
                tags = [("xf",) + x for x in xall(a1 >> 1, a1 & 1)]
                deps.append(add("S", lambda tags=tags: b.wait(lg=tags), pos - 1, pos + 3, [xrd.get(x) for x in xall(a1 >> 1, a1 & 1)]))
            o = add_dma(pre_x(s, q), lambda s=s, q=q: dma_x(s, q), pos, pos + 3, deps)
            xw[s, q >> 2].deps.append(o)
        else:
            if s and q == 0:
                deps.append(add("S", lambda s=s: b.wait(lg=[("df", s - 1, 3, 1)]), pos - 1, pos + 3, [dlast[s - 1]]))
            o = add_dma(pre_d(s, 3, q), lambda s=s, q=q: dma_d(s, q), pos, pos + 3, deps)
            if q == 3:
                r0 = pos + dlat
                dp = add("S", lambda s=s: b.wait(vm=[("D", s, 3)]), r0 - 1, r0 + 6, [o])
                for kk in range(8):
                    dp = add("D", rd_d(s, 3, kk & 3, kk >> 2), r0 + kk, r0 + kk + 10, [dp])
                dlast[s] = dp
                dfree[0] = r0 + 16
        if k != "D":
            last_dma = pos
        if k != "D" and s in O.get("miss", (4, 8, 12)) and not any(it[1] == s for kk in "WX" for it in queue[kk]):
            fpos += O.get("pause", 0)
        fpos += (gm if (k != "D" and s in O.get("miss", (4, 8, 12))) else gh) * (O.get("gw", 1.0) if k == "W" else 1.0)

    touches = []
    if O.get("touchd", 1):
        tps = O.get("tdpos", TDPOS)
        for i, tp in enumerate(tps):
            touches.append(add("V", lambda: b.vm("global_load_dword v23, v22, s[4:5]", "touch"), tp, tp + 3))
            if i + 1 < len(tps):
                valu[tp + 5].append(f"v_add_u32 v22, s{sTS}, v22" if O.get("tlite") else f"v_add_u32 v22, {TL * 128}, v22")

    if O.get("wt"):
        p_ = None
        for P_ in range(1, O.get("wtn", 6)):
            tp = max(112 * (2 * P_) - O.get("wta", 336), 2 + 8 * P_)
            p_ = add("S", [f"s_add_u32 s{sRT}, s{sTS + 2}, {P_}"], tp - 4, tp, [p_])
            p_ = add("S", [f"s_and_b32 s{sRT}, s{sRT}, 7"], tp - 3, tp, [p_])
            p_ = add("S", [f"s_mul_i32 s{sRT}, s{sRT}, s{sTS + 1}"], tp - 2, tp, [p_])
            p_ = add("V", lambda: b.vm(f"buffer_load_dword v25, v26, {R('s', sW)}, s{sRT} offen", "touch"), tp, tp + 3, [p_])
            touches.append(p_)
    if O.get("codepf", 1):
        for tp in O.get("cpos", (1490,)):
            assert tp < NM - 60
            touches.append(add("V", lambda: b.vm(f"global_load_dword v24, v{vOUT}, s[46:47]", "touch"), tp, tp + 3))
    if touches:
        add("S", lambda: b.wait(vm=["touch"]), NM + 12, NM + 18, touches)

    add("X", [f"s_cmp_eq_u32 s{sCP}, 0", "s_cbranch_scc1 L_announce", "L_announced:"], beta(3) + 4, None, [bar[3]])
    slow.extend(["L_announce:", f"v_mov_b32 v{vFV}, 1", "s_mov_b64 exec, 1",
                 f"buffer_store_dword v{vFV}, off, {R('s', sG)}, 0 sc1", "s_mov_b64 exec, -1", "s_branch L_announced"])

    def poll(tag, srd, voff, soff, val, pos_issue, pos_check, deps=()):
        ld = (f"buffer_load_dword v{vFV}, off, {R('s', srd)}, {soff} sc1" if voff is None else
              f"buffer_load_dword v{vFV}, v{voff}, {R('s', srd)}, {soff} offen sc1")
        if O.get("nopoll"):
            val = 0
        o1 = add("V", lambda: b.vm(ld, tag), pos_issue, pos_issue + 3, deps)
        o2 = add("S", lambda: b.wait(vm=[tag]), pos_check - 1, pos_check + 1, [o1])
        o3 = add("X", [f"v_cmp_gt_u32 vcc, {val}, v{vFV}", f"s_cbranch_vccnz L_slow_{tag}", f"L_back_{tag}:"], pos_check, pos_check + 1, [o2])
        slow.extend([f"L_slow_{tag}:", f"s_mov_b32 s{sSPIN}, 0", f"L_spin_{tag}:", ld,
                     f"s_add_u32 s{sSPIN}, s{sSPIN}, 1", f"s_cmp_gt_u32 s{sSPIN}, 0x40000",
                     "s_cbranch_scc1 L_end", "s_waitcnt vmcnt(0)",
                     f"v_cmp_gt_u32 vcc, {val}, v{vFV}", f"s_cbranch_vccnz L_spin_{tag}", f"s_branch L_back_{tag}"])
        return o3
    pcnt = poll("cnt", sG, None, "0", 1, 56 * 16 + 50, 56 * 19 + 50)

    assert last_dma + 4 < NM - 24
    vHD, vHR, vHR2, vPW, vPR, vHD2 = 5, 6, 7, 8, 9, 10
    aset = [f"v_mov_b32 v{vHD}, v29", f"v_add_u32 v{vHR}, 65536, v28", f"v_add_u32 v{vHR2}, 131072, v28",
            f"v_lshl_add_u32 v{vPW}, v0, 2, s{sM0X}", f"v_xor_b32 v{vPR}, 32768, v{vPW}",
            f"v_sub_u32 v{vHD2}, v29, v{vL16}", f"v_lshl_add_u32 v{vHD2}, v{vHD2}, 3, v{vL16}"]
    aset += ["v_and_b32 v2, 15, v0", "v_lshlrev_b32 v2, 11, v2", f"v_bfe_u32 v{vOUT}, v0, 4, 1",
             f"v_lshl_add_u32 v2, v{vOUT}, 5, v2", f"v_lshrrev_b32 v{vOUT}, 5, v0", f"v_lshl_add_u32 v{vOUT}, v{vOUT}, 4, v2"]
    for i, x in enumerate(aset):
        valu[NM - 24 + i].append(x)

    hout = lambda blk, jm: acc1(blk, 0, jm) if blk < 5 else 112 + 4 * jm

    def epi(blk):
        ins = []
        for j0 in (0, 2):
            g = [acc1(blk, 0, j0) + x for x in range(8)]
            t = [vTMP + x for x in range(8)]
            at = max(adone[2 * blk, j0], adone[2 * blk, j0 + 1]) + 7
            ins += [(at, f"v_mul_f32 v{t[x]}, s{sNL2E}, v{g[x]}") for x in range(8)]
            ins += [(at, f"v_exp_f32 v{t[x]}, v{t[x]}") for x in range(8)]
            ins += [(at, f"v_add_f32 v{t[x]}, 1.0, v{t[x]}") for x in range(8)]
            ins += [(at, f"v_rcp_f32 v{t[x]}, v{t[x]}") for x in range(8)]
            ins += [(at, f"v_mul_f32 v{g[x]}, v{g[x]}, v{t[x]}") for x in range(8)]
        for j0 in (2, 0):
            g = [acc1(blk, 0, j0) + x for x in range(8)]
            u = [acc1(blk, 1, j0) + x for x in range(8)]
            at = max(adone[2 * blk + 1, j0], adone[2 * blk + 1, j0 + 1]) + 7
            ins += [(at, f"v_mul_f32 v{u[x]}, v{g[x]}, v{u[x]}") for x in range(8)]
            for x in range(0, 8, 2):
                jm = j0 + (x >> 2)
                if blk == 0:
                    d = acc1(0, 0, j0) + (x >> 1)
                elif blk & 1:
                    d = hout(blk, jm) + ((x >> 1) & 1)
                else:
                    d = hout(blk - 1, jm) + 2 + ((x >> 1) & 1)
                ins.append((at, f"v_cvt_pk_bf16_f32 v{d}, v{u[x]}, v{u[x + 1]}"))
            if blk == 0:
                d = acc1(0, 0, j0)
                ins.append((at, "s_nop 1"))
                ins.append((at, f"v_permlane32_swap_b32 v{d}, v{d + 2}"))
                ins.append((at, f"v_permlane32_swap_b32 v{d + 1}, v{d + 3}"))
                ins.append((at, ("st", f"buffer_store_dwordx4 {R('v', d)}, v{vHL}, {R('s', sHS)}, s{sHLB if j0 else sHLA} offen sc1", 1, None)))
            elif not blk & 1:
                r = sHB if j0 else sHA
                for jm in (j0, j0 + 1):
                    ins.append((at, ("st", f"buffer_store_dwordx4 {R('v', hout(blk - 1, jm))}, v{vL16}, {R('s', sHS)}, s{r} offen offset:{(jm & 1) * 1024} sc1",
                                     1 + blk // 2, f"s_add_u32 s{r}, s{r}, 65536" if jm & 1 and blk < 6 else None)))
        return ins

    tslot = lambda n: 17 if n < NM else 19 if n < NM + 26 else O.get("tt", 34) if n < NT else 12 + 560 // O.get("e6", 60) if n < NT + 2 + O.get("e6", 60) else O.get("t2", 17)
    T = {NM - 16: 0}
    for n in range(NM - 16, NT + NE + 896 + 200):
        T[n + 1] = T[n] + tslot(n)

    def at_time(t):
        n = NM - 16
        while T[n] < t:
            n += 1
        return n
    cost = lambda x: 0 if isinstance(x, tuple) else 2 if ("exp" in x or "rcp" in x) else 1
    last_store = {}
    stimes = []
    fp = 0.0
    edone = {}
    for blk in range(7):
        for at, x in epi(blk):
            if isinstance(x, tuple):
                ps = max(pos + 1, at_time(stimes[-1] + O.get("sg%d" % x[2], O.get("sg", 400))) if stimes else 0)
                stimes.append(T[ps])
                o = add("V", lambda x=x: b.vm(x[1], ("H", x[2])), ps, ps + 2, [last_store.get(x[2])])
                last_store[x[2]] = o
                if x[3]:
                    add("S", [x[3]], ps, ps + 8, [o])
            else:
                fp = max(fp, at)
                pos = int(fp)
                valu[pos].append(x)
                fp += cost(x) / (O.get("er0", 5.0) if blk == 0 else O.get("er", 4.4) if pos < NT else O.get("er2", 2.5))
        edone[blk] = pos + 1
    EE = edone[6]
    assert edone[5] <= NT + 30 and EE <= NT + 94
    if O.get("verbose"):
        print("epilogue ends", {k: v - NM for k, v in edone.items()})

    flagop = {}

    def flag(stage, pos, soff=sFP, val=None):
        valu[pos - 2].append(f"v_mov_b32 v2, {stage if val is None else val}")
        o = add("S", lambda: b.wait(vm=[("H", stage)]), pos - 1, pos + 1, [last_store[stage], pcnt])

        def f():
            e("s_mov_b64 exec, 1")
            b.vm(f"buffer_store_dword v2, off, {R('s', sF)}, s{soff} sc1")
            e("s_mov_b64 exec, -1")
        flagop[stage] = add("X", f, pos, pos + 2, [o])
    for st in range(1, 5):
        if st == 3 and O.get("no3"):
            continue
        flag(st, at_time(T[last_store[st].pos] + O.get("fd%d" % st, O.get("fd", 1000))))

    KL = 16
    JL = [0, 2, 1, 3, 4, 5, 6, 7]
    quads = [(k0, jl) for k0 in range(0, 28 - KL, 4) for jl in range(8)] + [(k0, jl) for jl in JL for k0 in range(28 - KL, 28, 4)]
    frags = [(k0 + k, jl) for k0, jl in quads for k in range(4)]
    hreg = lambda H: WR[H % 8]
    started = set()
    nchain = 0
    for Q, (k0, jl) in enumerate(quads):
        for nb in (range(4) if Q & 1 else range(3, -1, -1)):
            for k in (range(3, -1, -1) if nchain & 1 else range(4)):
                ks, H = k0 + k, 4 * Q + k
                d = R(acc2f(jl), acc2(jl, nb))
                c = d if (jl, nb) in started else "0"
                started.add((jl, nb))
                slots.append((f"v_mfma_f32_16x16x32_bf16 {d}, {R(ureg(ks)[0], ureg(ks)[1] + 4 * nb)}, {R('a', hreg(H))}, {c}",
                              [("df", ks, nb, 1), ("hf", H)], []))
            nchain += 1
    NEND = len(slots)
    first_use = lambda u: N2 + 16 * min(H >> 2 for H, (ks, jl) in enumerate(frags) if ks == u)
    last_use = lambda u: N2 + 16 * max(H >> 2 for H, (ks, jl) in enumerate(frags) if ks == u) + 15
    HB = [131072, 65536, 98304]

    beta2 = lambda g: N2 + 64 * g + O.get("beta2", 46) if g >= 0 else NT - O.get("beta2i", 13)
    b2w, b2 = {}, {}
    b2lg = defaultdict(list)
    hp = None
    for g in range(-1, 14):
        if g >= 0:
            for i in range(16):
                H = 16 * g + i
                pos = N2 + 16 * ((H >> 2) - 1) + O.get("hsp", 2) * (H & 3)
                if i < 4:
                    pos = max(pos, beta2(g - 1) + 2 + (H & 3))
                off = HB[g % 3] + i * 1024
                v, off = (vHR, off - 65536) if off < 131072 else (vHR2, off - 131072)
                txt = f"ds_read_b128 {R('a', hreg(H))}, v{v} offset:{off}"
                hp = add("D", lambda txt=txt, H=H: b.lg(txt, ("hf", H)), pos, max(pos + 1, min(pos + 5, N2 + 16 * (H >> 2) - 4)), [hp, b2[g - 1] if i == 0 else None])
            b2lg[g].append(("hf", 16 * g + 15))
        else:
            hp = prev
            b2lg[g].append(("wf", len(frs) - 1, 1))
        if g < 13:
            b2w[g] = add("S", lambda g=g: b.wait(vm=[("h", 8 * g + 15)], lg=b2lg[g]), beta2(g), beta2(g) + 1, [hp])
            b2[g] = add("S", ["s_barrier" if not O.get("nobar") else "s_nop 0"], beta2(g) + 1, beta2(g) + 2, [b2w[g]])

    VG = O.get("vg", 70)
    LAT = O.get("lat", 900)
    pf = O.get("pollpf", 900)
    SK = O.get("sk", 100)

    hpos = {}
    h0 = NM + O.get("h0", 150)
    for pi in range(112):
        g, i = pi >> 3, pi & 7
        if g == 0:
            hpos[pi] = at_time(T[h0] + i * VG)
        elif g <= 2:
            hpos[pi] = at_time(T[beta2(-1) + 2] + (pi - 8) * O.get("vg1", 75) + (O.get("g2d", 0) + (pi - 16) * O.get("vg2", 40) if g == 2 else 0))
        else:
            hpos[pi] = max(beta2(g - 3) + 3 + (8 if g < O.get("gq", 9) else O.get("hq", 8)) * i, hpos[pi - 1] + O.get("hmin", 4))
    slot_free, slot_dep = {}, {}
    for sl, (s_, a) in enumerate(((15, 0), (15, 1), (14, 1))):
        slot_free[sl] = xpos[xlast(s_, a)] + 7
        slot_dep[sl] = ([xrd[x] for x in xall(s_, a)], [("xf",) + x for x in xall(s_, a)])
    slot_free[3] = max(dfree[0], NM - 16)
    slot_dep[3] = ([dlast[NPF - 1]], [("df", NPF - 1, 3, 1)]) if NPF else ([], [])
    htimes = sorted(T[p_] for p_ in hpos.values())
    tn = 0
    rdiv = []
    dmas = []
    for u in range(NPF, 28):
        sl = min(slot_free, key=lambda x: (slot_free[x], x))
        dep, tag = slot_dep[sl]
        dps = []
        for q in range(4):
            tn = max(tn, T[slot_free[sl]])
            while True:
                gapd = VG if tn < T[N2] else O.get("vgd", 150)
                keep = gapd - 8 if tn < T[N2] else 50
                near = [t + keep for t in htimes if abs(t - tn) < keep]
                near += [t + SK for t in stimes if t - 40 < tn < t + SK]
                if not near:
                    break
                tn = max(near)
            pos = at_time(tn)
            dps.append(pos)
            tn += gapd
        ready = at_time(T[pos] + LAT)
        free = {10: edone[0], 11: last_store[1].pos + 4, 12: edone[1], 13: edone[2], 14: last_store[2].pos + 4, 15: edone[3],
                16: edone[4], 17: edone[4], 18: last_store[3].pos + 4, 19: last_store[4].pos + 4}.get(
            u, NM if u < NS else last_use(u - NS) + 1)
        r0 = max(min(ready, first_use(u) - 26), free, pos + 4)
        while True:
            sp = 1 if r0 < NT else 2
            r1 = int(r0 + 8 * sp)
            clash = [iv for iv in rdiv if iv[0] < r1 and r0 < iv[1]]
            if not clash:
                break
            r0 = max(iv[1] for iv in clash)
        rdiv.append((r0, r1))
        assert r1 <= first_use(u) - 4, (u, r0, first_use(u))
        if O.get("verbose"):
            print("unit", u, "slot", sl, "dma", dps, "read", r0, "use", first_use(u))
        ws = []
        k = 0
        dp = {11: last_store[1], 14: last_store[2], 18: last_store[3], 19: last_store[4]}.get(u)
        for half in range(2):
            p_ = int(r0 + sp * k)
            w = add("S", lambda u=u, half=half: b.wait(vm=[("D", u, 2 * half + 1)]), p_ - 1, p_ + 3)
            ws.append(w)
            for nb in range(4):
                p_ = int(r0 + sp * k)
                dp = add("D", rd_d(u, sl, nb, half), p_, min(p_ + 6, first_use(u) - 2), [w, dp])
                k += 1
        for q in range(4):
            dmas.append((dps[q], "D", (u, sl, q, dep, tag, ws)))
        dlast[u] = dp
        slot_free[sl] = r1 + 5
        slot_dep[sl] = ([dp], [("df", u, 3, 1)])
    for pi in range(112):
        dmas.append((hpos[pi], "h", pi))
    dmas.sort(key=lambda x: x[0])
    stage_of = lambda ks: 1 if ks < 4 else 2 if ks < 12 else 4 if O.get("no3") else 2 + ((ks - 4) >> 3)
    seen = 0
    chk = pcnt
    for pos, kind, a in dmas:
        if kind == "D":
            u, sl, q, dep, tag, ws = a
            deps = []
            if q == 0:
                deps = [add("S", lambda tag=tag: b.wait(lg=tag), pos - 1, pos + 3, dep)]
            o = add_dma(pre_d(u, sl, q), lambda u=u, q=q: dma_d(u, q), pos, pos + 3, deps)
            if q & 1:
                ws[q >> 1].deps.append(o)
        else:
            pi = a
            ks, jl = frags[2 * pi]
            ks1 = frags[2 * pi + 1][0]
            g, i = pi >> 3, pi & 7
            deps = [bar[27] if g == 0 else b2[max(g - 3, -1)]]
            if stage_of(ks1) > seen:
                seen = stage_of(ks1)
                chk = poll(f"f{seen}", sF, vFP, f"s{sFC}", seen, max(at_time(T[pos] - O.get("pf%d" % seen, pf)), chk.pos + 2), pos - 1, [chk])
                chk.deps.append(flagop[seen])
                assert flagop[seen].pos < chk.pos
                if O.get("verbose"):
                    print("poll", seen, "check at", pos - 1 - NM, "own flag at", flagop[seen].pos - NM)
            deps.append(chk)
            g_ = m0_ops(sM0H, HB[g % 3] + (i >> 1) * 4096) + [[f"s_mov_b32 s{sA}, {ks * 8192 + jl * 1024 - (i & 1) * 2048}"]]
            if O.get("dx"):
                g_[-1] = [f"s_add_u32 s{sA}, s{sRT + (i & 1)}, {(ks & ~3) * 8192 + jl * 1024 + (2048 if i & 1 == 0 else 0)}"]
            txt = f"buffer_load_dwordx4 v{vHD if ks1 == ks else vHD2}, {R('s', sHL)}, s{sA} offen offset:{(i & 1) * 2048} sc1 lds"
            o = add_dma(g_, lambda txt=txt, pi=pi: b.vm(txt, ("h", pi)) if pi < O.get("noh", 999) else b.vm_tag.__setitem__(("h", pi), 0), pos, pos + 3, deps)
            if i == 7:
                b2w[g - 1].deps.append(o)
                assert pos + 3 < beta2(g - 1), (pi, pos, beta2(g - 1))

    NQ = N2 + 32 * (28 - KL)
    eend = lambda jl: NQ + 64 * (JL.index(jl) + 1)
    add("X", [f"s_add_u32 s{sHS}, s{sF}, {XOFF}", f"s_addc_u32 s{sHS + 1}, s{sF + 1}, 0", f"s_mov_b32 s{sHS + 2}, {1024 * 8192}"],
        NQ, None, [last_store[4]])
    valu[NQ + 8].append(f"v_add_u32 v{vHL}, 4096, v{vL16}")
    add("S", [f"s_mov_b32 s{sB_}, 32768"], NQ + 10)

    zone = lambda jl: 32 if jl & 1 else 48

    def lds_swap(jl):
        off = (jl >> 2) * 8192 + (jl & 1) * 4096
        wp = add("S", lambda: b.wait(lg=[("df", u, 3, 1) for u in range(28)]), eend(jl) + 4, None, list(dlast.values()))
        for k in range(16):
            pos = eend(jl) + 6 + (O.get("wsp", 8) * k) // 4
            txt = f"ds_write_b32 v{vPW}, a{acc2(jl, 0) + k} offset:{off + k * 256}"
            wp = add("D", lambda txt=txt, k=k: b.lg(txt, ("pw", jl, k >> 2)), pos, pos + 3, [wp])
        g = min(g for g in b2 if beta2(g) > pos + 6)
        b2w[g].deps.append(wp)
        b2lg[g].append(("pw", jl, 3))
        rp = b2[g]
        for k in range(8):
            pos = beta2(g) + 3 + (3 * k) // 2
            txt = f"ds_read2st64_b32 {R('v', zone(jl) + 2 * k, 2)}, v{vPR} offset0:{off // 256 + 2 * k} offset1:{off // 256 + 2 * k + 1}"
            rp = add("D", lambda txt=txt, k=k: b.lg(txt, ("pr", jl, k >> 1)), pos, pos + 4, [rp])
        return rp
    xldl = {}
    for e_ in range(2):
        ra = lds_swap(e_)
        p0 = eend(2 + e_) + 4
        assert ra.pos + 4 < p0
        add("S", lambda e_=e_: b.wait(lg=[("pr", e_, 3)]), p0 - 1, p0, [ra])
        sp_ = None
        for k in range(4):
            pos = p0 + 2 * k
            a, s_ = acc2(2 + e_, k), zone(e_) + 4 * k
            for x in range(4):
                valu[pos + (x >> 1)].append(f"v_add_f32 v{a + x}, v{a + x}, v{s_ + x}")
            ps = p0 + 2 + O.get("ssp%d" % e_, (16, 8)[e_]) * k
            txt = f"buffer_store_dwordx4 {R('v', a)}, v{vHL if e_ else vL16}, {R('s', sHS)}, s{sXO} offen offset:{k * 1024} {O.get('xst', 'sc1')}"
            if O.get("xhalf") and k & 1 == 0:
                continue
            sp_ = add("V", lambda txt=txt, e_=e_: b.vm(txt, ("H", 5 + e_)), ps, ps + 2, [sp_])
        last_store[5 + e_] = sp_
        if O.get("x1") and e_ == 0:
            continue
        xf = sp_.pos + O.get("xfd%d" % e_, (64, 56)[e_])
        flag(5 + e_, xf, sXFO, 1 + e_)
        xc = min(xf + O.get("xpd%d" % e_, (140, 110)[e_]), NEND - 8)
        chk = poll(f"fx{e_}", sF, None, f"s{sXFI}", 1 + e_, max(xc - O.get("xpf%d" % e_, 50), chk.pos + 2), xc, [chk])
        chk.deps.append(flagop[5 + e_])
        assert flagop[5 + e_].pos < chk.pos
        lp = chk
        if O.get("x1"):
            for k in range(4):
                txt = f"buffer_load_dwordx4 {R('v', acc2(2, k))}, v{vL16}, {R('s', sHS)}, s{sXI} offen offset:{k * 1024} sc1"
                lp = add("V", lambda txt=txt, k=k: b.vm(txt, ("xr", 0, k)), xc + 1 + k, xc + 3 + k, [lp])
            xldl[0] = lp
            xc += 4
        for k in range(4):
            txt = f"buffer_load_dwordx4 {R('v', acc2(2 + e_, k))}, v{vHL if e_ else vL16}, {R('s', sHS)}, s{sXI} offen offset:{k * 1024} sc1"
            if O.get("xhalf") and k & 1 == 0:
                continue
            lp = add("V", lambda txt=txt, k=k, e_=e_: b.vm(txt, ("xr", e_, k)), xc + 1 + k, xc + 3 + k, [lp])
        xldl[e_] = lp
        if O.get("verbose"):
            print("exchange", e_, "adds", p0, "flag", xf, "check", xc, "end", NEND)
    rc = [lds_swap(4), lds_swap(5)]

    def fin(e_, k2, pk):
        ins = []
        for k in (k2, k2 + 1):
            a = acc2(6 + e_, k)
            for s_ in (zone(e_) + 4 * k, acc2(2 + e_, k)):
                if pk:
                    ins += [f"v_pk_add_f32 {R('v', a + x, 2)}, {R('v', a + x, 2)}, {R('v', s_ + x, 2)}" for x in (0, 2)]
                else:
                    ins += [f"v_add_f32 v{a + x}, v{a + x}, v{s_ + x}" for x in range(4)]
        a = acc2(6 + e_, k2)
        ins += [f"v_cvt_pk_bf16_f32 v{a + x}, v{a + 2 * x}, v{a + 2 * x + 1}" for x in range(4)]
        ins += ["s_nop 1", f"v_permlane16_swap_b32 v{a}, v{a + 2}", f"v_permlane16_swap_b32 v{a + 1}, v{a + 3}"]
        so = f"s{sB_}" if e_ else "0"
        st = f"buffer_store_dwordx4 {R('v', a)}, v{vOUT}, {R('s', sO)}, {so} offen offset:{(k2 >> 1) * 64} {O.get('ofl%d' % e_, O.get('ofl', 'sc1'))}".rstrip()
        return ins, st
    p0 = eend(6) + 5 if not O.get("x1") else max(eend(6) + 5, min(xc + O["x1"], NEND - 26))
    add("S", lambda: b.wait(lg=[("pr", 4, 3)], vm=[("xr", 0, 3)]), p0 - 1, p0, [rc[0], xldl[0]])
    for k2 in (0, 2):
        ins, st = fin(0, k2, False)
        for x in ins[:-3]:
            valu[p0].append(x)
            if len(valu[p0]) >= 2:
                p0 += 1
        valu[p0].extend(ins[-3:])
        add("V", lambda st=st: b.vm(st), p0 + 1, p0 + 2)
        p0 += 1

    b.wait(vm=[("W", 0, 3 if nb2 else 6)])
    e("s_barrier")
    stamp()
    for f in pro[:4]:
        f()
    for jm in range(4):
        b.wait(vm=[("X", 0, 2 * jm + 1)])
        rd_x(0, jm)()
        if not nb2:
            rd_x(1, jm)()
    for f in pro[4:]:
        f()
    ops.sort(key=lambda o: (o.pos, o.seq))
    head = 0
    live = []

    def run(o, n):
        for d in o.deps:
            if not d.done:
                run(d, n)
        k = len(b.out)
        o.fn()
        o.done = True
        o.at = n
        if o.pos > n and o in ops:
            assert o.kind == "S" or O.get("lax"), ("forced early", o.kind, o.pos, n, b.out[-1])
        return sum(1 for x in b.out[k:] if not x.endswith(":"))

    over = two = 0
    notes = {112 * s_: f"GEMM1, K stage {s_} of this workgroup's order (64 deep)" for s_ in range(14)}
    notes.update({NM + 32 * k: f"GEMM1, last two stages of column block {k}; silu(gate) * up of the finished blocks in between" for k in range(7)})
    notes.update({NT + 128 * k: f"GEMM2, k-steps {4 * k}..{4 * k + 3} of all eight row blocks" for k in range(3)})
    notes.update({NQ + 64 * k: f"GEMM2, k-steps 12..27 of row block {jl}" for k, jl in enumerate(JL)})
    for n, (txt, lgt, vmt) in enumerate(slots):
        if n in notes:
            e("; ---- " + notes[n])
        if n in (NM, NT) or n in O.get("spos", ()):
            stamp()
        if txt is not None:
            assert b.issued(vmt, lgt), (n, txt)
            b.wait(vm=vmt, lg=lgt)
            e(txt)
            if n in O.get("trace", ()):
                r_ = TRC[O["trace"].index(n)]
                e(f"{'s_memrealtime' if O.get('rt') else 's_memtime'} s[{r_}:{r_ + 1}]")
        while head < len(ops) and ops[head].pos <= n:
            live.append(ops[head])
            head += 1
        live = [o for o in live if not o.done]
        live.sort(key=lambda o: (o.dead, o.seq))
        ready = lambda o: not o.done and all(d.done and (d.at < n or not d.setup or o.kind != "V") for d in o.deps)
        nxt = slots[n + 1] if n + 1 < len(slots) else (None, [], [])
        va = valu.pop(n, [])
        budget = 2 if txt is not None else 6
        if txt is not None and len(va) == 1 and cost(va[0]) == 1:
            budget = 1
        used = 0
        nmem = 0
        maxmem = O.get("maxmem", 1) if txt is not None and not NM + 24 <= n < EE else 9
        if nxt[0] is not None and b.issued(nxt[2], nxt[1]) and b.needs(nxt[2], nxt[1]):
            b.wait(vm=nxt[2], lg=nxt[1])
        else:
            while True:
                c = [o for o in live if o.kind == "S" and ready(o)]
                if not c:
                    break
                k = run(c[0], n)
                if k:
                    used += k - 1
                    break
        while True:
            c = [o for o in live if ready(o)]
            must = [o for o in live if not o.done and o.dead <= n + 1]
            if must:
                nmem += must[0].kind in "DV"
                used += run(must[0], n)
                continue
            if nmem >= maxmem:
                c = [o for o in c if o.kind not in "DV"]
            if used >= budget or not c:
                break
            mem = [o for o in c if o.kind in "DV"]
            if va and not mem:
                break
            nmem += bool(mem)
            used += run((mem or c)[0], n)
        two += nmem > 1 and n < NM
        over += max(0, used - budget) if n < NM else 0
        for x in va:
            e(x)
    for o in ops:
        if not o.done:
            run(o, NEND)
    assert not valu, list(valu)
    if O.get("verbose"):
        print("over budget in main:", over, "two mem:", two)
    stamp()

    b.wait(lg=[("pr", 5, 3)])
    e("s_nop 4")
    for k2 in (0, 2):
        b.wait(vm=[("xr", 1, k2 + 1)])
        ins, st = fin(1, k2, True)
        for x in ins:
            e(x)
        b.vm(st)
    if stamps:
        stamp()
        e("s_waitcnt vmcnt(0)")
        stamp(True)
        e("s_memrealtime s[98:99]")
        e("s_waitcnt lgkmcnt(0)")
        if "probe" in O:
            k = O["probe"]
            if O.get("probewg", 100) >= 0:
                e(f"s_cmp_lg_u32 s2, {O.get('probewg', 100)}")
                e("s_cbranch_scc1 L_end")
            if k == -1:
                e(f"s_mov_b32 s{sA}, 0")
            elif k == -2:
                e(f"s_sub_u32 s{sA}, s98, s100")
                e(f"s_mul_i32 s{sA}, s{sA}, 20")
            else:
                e(f"s_sub_u32 s{sA}, s{sST + k + 1}, s{sST + k}")
            e(f"s_min_u32 s{sA}, s{sA}, 100000")
            e(f"s_add_u32 s{sA}, s{sA}, 10000")
            e("L_probe:")
            e("s_memrealtime s[98:99]")
            e("s_waitcnt lgkmcnt(0)")
            e("s_sub_u32 s98, s98, s100")
            e(f"s_cmp_lt_u32 s98, s{sA}")
            e("s_cbranch_scc1 L_probe")
            e("s_endpgm")
        e(f"s_mov_b32 s{sF + 2}, 0x100000")
        e(f"s_lshl2_add_u32 s{sA}, s2, s{sWV}")
        e(f"s_lshl_b32 s{sA}, s{sA}, 7")
        e(f"s_add_u32 s{sA}, s{sA}, {SOFF}")
        vals = [sST + i + 2 * (sST + i >= sRT) for i in range(nst[0])] + [100, 98] + list(TRC[:len(O.get('trace', ()))])
        for i, r in enumerate(vals):
            e(f"v_mov_b32 v2, s{r}")
            e(f"buffer_store_dword v2, off, {R('s', sF)}, s{sA} offset:{4 * i}")
    e("s_endpgm")
    if "@SLOW@" in b.out:
        i = b.out.index("@SLOW@")
        b.out[i:i + 1] = slow
    else:
        for x in slow:
            e(x)
    e("L_end:")
    e("s_endpgm")
    if O.get("pads", 1):
        add_pads(b.out)
    return b.out, nst[0]


def isize(x):
    if x.endswith(":") or x.startswith((".", ";")):
        return 0
    op, _, rest = x.partition(" ")
    if op.startswith(("v_mfma", "ds_", "buffer_", "global_", "v_pk_", "s_load", "s_mem")):
        return 8
    if op in ("v_cvt_pk_bf16_f32", "v_lshl_add_u32", "v_bfe_u32", "v_mad_u32_u24", "v_mad_i32_i24", "v_mul_hi_u32", "v_lshl_add_u64"):
        return 8
    if op.startswith(("s_waitcnt", "s_barrier", "s_nop", "s_branch", "s_cbranch", "s_endpgm", "s_movk", "s_setprio", "s_getpc", "s_getreg")):
        return 4
    for a in rest.split(","):
        a = a.strip()
        if a.startswith("L_"):
            return 8
        try:
            v = int(a, 0)
        except ValueError:
            continue
        if not -16 <= v <= 64:
            return 8
    return 4


def add_pads(out):
    i = out.index("L_main:") + 1
    addr, k = 0, 0
    at = []
    while out[i] != "L_end:":
        page = k * 4096
        prev = out[i - 1]
        nxt = addr + isize(out[i])
        shadow = prev.startswith("v_mfma") and not out[i].startswith("s_")
        glued = out[i].startswith(("s_addc", "s_cbranch", "v_permlane")) or out[i].endswith(":") or " exec," in prev or " exec," in out[i]
        if addr >= page and not glued and (shadow or k == 0 or nxt + 12 > page + 60):
            assert addr + 4 <= page + 64, (k, addr)
            out[i:i] = [f"L_pad{k}:", "s_nop 0"]
            at.append(i + 1)
            addr += 4
            i += 2
            k += 1
            continue
        addr = nxt
        i += 1
    assert k >= 4
    for j, p in enumerate(at):
        out[p] = f"s_cbranch_vccnz {'L_pad%d' % (j + 4) if j + 4 < k else 'L_warm'}"


HEADER = """; Fused SwiGLU FFN: out = (silu(x @ w_gate) * (x @ w_up)) @ w_down in one launch of 256 workgroups (one per CU).
; @launch grid=(256,1,1) block=(256,1,1) lds=163840
.amdgcn_target "amdgcn-amd-amdhsa--gfx950"
.text
.globl {k}
.p2align 8
.type {k},@function
{k}:
"""
FOOTER = """.section .rodata,"a"
.p2align 6
.amdhsa_kernel {k}
  .amdhsa_next_free_vgpr 512
  .amdhsa_next_free_sgpr 102
  .amdhsa_accum_offset 256
  .amdhsa_group_segment_fixed_size 0
  .amdhsa_kernarg_size 56
  .amdhsa_user_sgpr_count 2
  .amdhsa_user_sgpr_kernarg_segment_ptr 1
  .amdhsa_system_sgpr_workgroup_id_x 1
  .amdhsa_float_denorm_mode_32 3
.end_amdhsa_kernel
"""


def write(path, **kw):
    body, n = gen(**kw)
    with open(path, "w") as f:
        f.write(HEADER.format(k=KNAME))
        f.write("\n".join(x if x.endswith(":") and not x.startswith(";") else "    " + " ".join(x.split()) for x in body) + "\n")
        f.write(FOOTER.format(k=KNAME))
    return n


if __name__ == "__main__":
    write(sys.argv[1] if len(sys.argv) > 1 else "standalone__swiglu_ffn__prompt.s")
```

```python
import sys
from collections import defaultdict

KNAME = "standalone__swiglu_ffn__prompt_kernel"
HOFF = 0x100000
FOFF = 0x0
XOFF = 0x1000000
SOFF = 0x80000


class B:
    def __init__(self):
        self.out = []
        self.vm_n = 0
        self.vm_tag = {}
        self.vm_done = 0
        self.lg_n = 0
        self.lg_tag = {}
        self.lg_done = 0

    def e(self, s):
        self.out.append(s)

    def vm(self, s, tag=None):
        if s.endswith(" lds") and " m0," in self.out[-1]:
            self.e("s_nop 0")
        self.e(s)
        self.vm_n += 1
        if tag is not None:
            self.vm_tag[tag] = self.vm_n

    def lg(self, s, tag=None):
        self.e(s)
        self.lg_n += 1
        if tag is not None:
            self.lg_tag[tag] = self.lg_n

    def issued(self, vm=(), lg=()):
        return all(t in self.vm_tag for t in vm) and all(t in self.lg_tag for t in lg)

    def needs(self, vm=(), lg=()):
        return (max([self.vm_tag[t] for t in vm], default=0) > self.vm_done or
                max([self.lg_tag[t] for t in lg], default=0) > self.lg_done)

    def wait(self, vm=(), lg=()):
        parts = []
        need = max([self.vm_tag[t] for t in vm], default=0)
        if need > self.vm_done:
            n = self.vm_n - need
            parts.append(f"vmcnt({min(n, 63)})")
            self.vm_done = need if n <= 63 else self.vm_n - 63
        need = max([self.lg_tag[t] for t in lg], default=0)
        if need > self.lg_done:
            n = self.lg_n - need
            parts.append(f"lgkmcnt({min(n, 15)})")
            self.lg_done = need if n <= 15 else self.lg_n - 15
        if parts:
            self.e("s_waitcnt " + " ".join(parts))

    def wait_all(self, vm=False, lg=False):
        parts = []
        if vm and self.vm_done < self.vm_n:
            parts.append("vmcnt(0)")
            self.vm_done = self.vm_n
        if lg and self.lg_done < self.lg_n:
            parts.append("lgkmcnt(0)")
            self.lg_done = self.lg_n
        if parts:
            self.e("s_waitcnt " + " ".join(parts))


class Op:
    __slots__ = ("kind", "fn", "pos", "dead", "deps", "done", "seq", "at", "setup")

    def __init__(self, kind, fn, pos, dead, deps, seq):
        self.kind, self.fn, self.pos, self.dead, self.deps, self.seq = kind, fn, pos, dead, deps, seq
        self.done = False
        self.at = None
        self.setup = False


def R(p, a, n=4):
    return f"{p}[{a}:{a + n - 1}]"


sX, sW, sD, sHS, sHL, sO, sF, sG = 8, 12, 16, 20, 24, 28, 32, 36
sWV = 40
sT0 = 41
sXQ = 48
sM0X, sM0W, sTI = 56, 57, 58
sHA, sHB, sHLA, sHLB = 59, 60, 61, 62
sFP, sFC, sCP, sNL2E = 63, 64, 65, 66
sSPIN = 67
sA, sB_ = 68, 69
sM0H, sXO, sXI, sXFO, sXFI = 0, 1, 41, 42, 43
sX0 = 6
sPM, sWO, sXO_ = 70, 72, 73
sTS = 74
sGR = 77
sRT = 92
sK = 80
sST = 78
vXD, vXR, vWD, vWR, vDD, vDR, vL16, vHL, vFP, vFV, vTMP, vWR2, vOUT = 1, 3, 5, 12, 13, 14, 18, 19, 20, 21, 22, 30, 31
ACC = 32
aXF, aWF, aDF = 0, 64, 88
RW = 6
RH = 8
TRC = (80, 82, 84, 86, 88, 90, 94, 96)
TDPOS = (300, 700, 760, 1150)
WST = 64 * 7168


def acc1(b, gu, jm):
    return ACC + 32 * b + 16 * gu + 4 * jm


def acc2(jl, nb):
    return (0, 16, 192, 208, 32, 48, 224, 240)[jl] + 4 * nb


def acc2f(jl):
    return "v" if jl & 2 else "a"


BEST = {'h0': 170, 'pf1': 700, 'g2d': 400, 'pf2': 900, 'xfd1': 50, 'wsp': 8, 'xpd1': 130, 'sg2': 250, 'sk': 150, 'dprio': 120,
        'fd4': 1000, 'sg1': 0, 'gw': 1.0, 'sg3': 250, 'pf4': 900, 'ssp0': 8, 'vgd': 165, 'dper': 138, 'nb2': 4, 'ssp1': 4, 'dlat': 80,
        'sg4': 150, 'xpf1': 30, 'pause': 30, 'fd3': 1200, 'lat': 600, 'pf3': 600, 'fd1': 850, 'vg': 70, 'npro': 5, 'vg2': 60,
        'vg1': 90, 'beta2i': 13, 'map2': 3, 'fd2': 1000, 'gm': 8, 'xpd0': 140}
BEST.update({'nb2': 2, 'e6': 44, 'sg4': 400, 'vg2': 20, 'perm': 'split4', 'chk': 1, 'miss': (), 'gh': 5.8, 'dx': 2, 'er0': 7, 'er': 4.6, 'er2': 3.5, 'fast': 0, 'cpos': (), 'rsel': 2, 'no3': 1, 'sg4': 250, 'pf4': 700, 'x1': 0, 'tr': 2})
BEST.update({'fd2': 1200, 'pf1': 900, 'vg': 85, 'tt': 32, 'wsp': 6, 'xpd1': 110, 'pf4': 500, 'er': 4.4})


def stage_orders(kind):
    def lead(r, n, d, start=1):
        o = list(range(16))
        for s in range(start, 16):
            if s % n == r:
                o.remove(s)
                o.insert(max(s - d, 0), s)
        return o
    if kind == "none":
        return [list(range(16))]
    if kind == "rot4":
        return [[(s & ~3) + ((s + r) & 3) for s in range(16)] for r in range(4)]
    if kind == "rot2":
        return [[(s & ~1) + ((s + r) & 1) for s in range(16)] for r in range(2)]
    if kind == "lead1":
        return [lead(r, 4, 1) for r in range(4)]
    if kind == "lead2":
        return [lead(r, 4, 2) for r in range(4)]
    if kind == "rot4lead1":
        return [[(s + r) & 3 for s in range(3)] + [x for x in lead(r, 4, 1, 4) if x not in [(s + r) & 3 for s in range(3)]] for r in range(4)]
    if kind == "lead1x":
        return [[(x + 8 * g) & 15 for x in lead(r, 4, 1)] for g in range(2) for r in range(4)]
    if kind == "trail0":
        return [lead(r, 4, 1) for r in range(4)] + [list(range(16))] * 4
    if kind == "trail1":
        return [lead(r, 4, 1) for r in range(4)] + [[15] + list(range(15))] * 4
    if kind == "trail1l":
        return [lead(r, 4, 1) for r in range(4)] + [[15] + [x for x in lead(r, 4, 1) if x != 15] for r in range(4)]
    if kind.startswith("split"):
        n = int(kind[5:])
        a = [[y for y in lead(r, 4, 1) if y < 16 - n] + list(range(16 - n, 16)) for r in range(4)]
        b_ = [[16 - n + y for y in lead(r, 4, 1) if y < n] + list(range(16 - n)) for r in range(4)]
        return a + b_
    if kind.startswith("spl2_"):
        n = int(kind[5:])
        a = [[y for y in lead(r, 4, 2) if y < 16 - n] + list(range(16 - n, 16)) for r in range(4)]
        b_ = [[16 - n + y for y in lead(r, 4, 2) if y < n] + list(range(16 - n)) for r in range(4)]
        return a + b_
    if kind.startswith("spl0_"):
        n = int(kind[5:])
        return [list(range(16))] * 4 + [list(range(16 - n, 16)) + list(range(16 - n))] * 4
    if kind == "rtrail":
        return [[(s & ~3) + ((s + r) & 3) for s in range(16)] for r in range(4)] + [[15] + list(range(15))] * 4
    if kind == "nonex":
        return [[(x + 8 * g) & 15 for x in range(16)] for g in range(2) for r in range(4)]
    if kind == "lead1h":
        return [[(x + 8 * g) & 15 for x in [y for y in lead(r, 4, 1) if y < 8] + list(range(8, 16))] for g in range(2) for r in range(4)]
    if kind == "rot4h":
        return [[(x + 8 * g) & 15 for x in [(s & ~3) + ((s + r) & 3) for s in range(8)] + list(range(8, 16))] for g in range(2) for r in range(4)]
    if kind == "rot4l":
        return [[(x + 8 * g) & 15 for x in [(s & ~3) + ((s + r) & 3) for s in range(8)] + [y for y in lead(r, 4, 1) if y >= 8]] for g in range(2) for r in range(4)]
    if kind == "lead1y":
        return [[x ^ (4 * g) for x in lead(r, 4, 1)] for g in range(2) for r in range(4)]
    if kind == "lead1z":
        return [[x ^ (2 * g) for x in lead(r, 4, 1)] for g in range(2) for r in range(4)]
    if kind == "lead1r":
        return [[15 - x if g else x for x in lead(r, 4, 1)] for g in range(2) for r in range(4)]
    if kind == "lead2x":
        return [[(x + 8 * g) & 15 for x in lead(r, 4, 2)] for g in range(2) for r in range(4)]
    if kind == "lead21x":
        return [[(x + 8 * g) & 15 for x in lead(r & 1, 2, 1)] for g in range(2) for r in range(4)]
    if kind == "rot4x":
        return [[(((s & ~3) + ((s + r) & 3)) + 8 * g) & 15 for s in range(16)] for g in range(2) for r in range(4)]
    if kind == "rot4s":
        a = [[(s & ~3) + ((s + r) & 3) for s in range(16)] for r in range(4)]
        b_ = [[(s + r) & 1 for s in range(2)] + [2 + (s & ~3) + ((s + r) & 3) for s in range(12)] + [14 + ((s + r) & 1) for s in range(2)] for r in range(4)]
        return a + b_


def gen(stamps=False, **O):
    O = dict(BEST, **O)
    b = B()
    e = b.e
    nst = [0]

    def stamp(last=False):
        if stamps and (stamps != 2 or last):
            i = sST + nst[0]
            i += 2 * (i >= sRT)
            assert i < 98
            nst[0] += 1
            b.wait_all(lg=True)
            e("s_memtime s[98:99]")
            e("s_waitcnt lgkmcnt(0)")
            e(f"s_mov_b32 s{i}, s98")

    wrow = O.get("wrow", 0)
    NWQ = 8 if wrow else 7
    SIG = [65536, 131072, 98304 if wrow else 94208]
    sig = lambda s: SIG[s % 3]
    slow = []

    if stamps:
        e("s_memrealtime s[100:101]")
        e(f"s_memtime s[{sST}:{sST + 1}]")
        nst[0] += 1
    e(f"s_load_dwordx8 s[{sK}:{sK + 7}], s[0:1], 0")
    e(f"s_load_dwordx4 s[{sK + 8}:{sK + 11}], s[0:1], 32")
    e(f"s_load_dwordx2 s[{sF}:{sF + 1}], s[0:1], 48")
    e("s_cmp_ge_u32 s2, 256")
    e("s_cbranch_scc1 L_end")
    e("v_lshrrev_b32 v2, 6, v0")
    e("v_and_b32 v0, 63, v0")
    e(f"v_readfirstlane_b32 s{sWV}, v2")
    e("s_and_b32 s41, s2, 1")
    e("s_bfe_u32 s42, s2, 0x20001")
    e("s_bfe_u32 s43, s2, 0x20003")
    e("s_lshr_b32 s44, s2, 5")
    e("s_xor_b32 s45, s41, s42")
    e("s_and_b32 s45, s45, 1")
    e("s_lshl2_add_u32 s45, s45, s43")
    sMT, sJ, sMB, sNB = 45, 46, 47, 3
    e("v_lshrrev_b32 v25, 3, v0")
    e("v_lshrrev_b32 v26, 4, v0")
    e("v_and_b32 v27, 7, v0")
    e("v_xor_b32 v23, v27, v26")
    e("v_lshlrev_b32 v25, 11, v25")
    e(f"v_lshl_add_u32 v{vXD}, v23, 4, v25")
    e(f"v_xor_b32 v{vXD + 1}, 64, v{vXD}")
    perms = stage_orders(O["perm"])
    assert len(perms) == 8
    rsel = O.get("rsel", 0)
    if rsel == 0:
        e(f"s_add_u32 s{sTI}, s43, s44")
    elif rsel == 1:
        e(f"s_lshr_b32 s{sTI}, s44, 2")
        e(f"s_add_u32 s{sTI}, s{sTI}, s43")
        e(f"s_and_b32 s{sA}, s42, 2")
        e(f"s_add_u32 s{sTI}, s{sTI}, s{sA}")
    elif rsel == 2:
        e(f"s_lshr_b32 s{sTI}, s44, 1")
        e(f"s_add_u32 s{sTI}, s{sTI}, s43")
    elif rsel == 3:
        e(f"s_add_u32 s{sTI}, s44, 1")
        e(f"s_lshr_b32 s{sTI}, s{sTI}, 1")
        e(f"s_add_u32 s{sTI}, s{sTI}, s43")
    e(f"s_and_b32 s{sTI}, s{sTI}, 3")
    e(f"s_lshl2_add_u32 s{sTI}, s41, s{sTI}")
    e(f"s_lshl_b32 s{sA}, s{sTI}, 2")
    if "perm3" in O:
        p3 = stage_orders(O["perm3"])
        e(f"s_add_u32 s{sB_}, s44, 1")
        e(f"s_bfe_u32 s{sB_}, s{sB_}, 0x10001")
        e(f"s_cselect_b32 s{sWO}, {sum(pm[0] << (4 * k) for k, pm in enumerate(p3)):#x}, 0")
        e(f"s_cselect_b32 s{sXO_}, 0, {sum(pm[0] << (4 * k) for k, pm in enumerate(perms)):#x}")
        e(f"s_or_b32 s{sWO}, s{sWO}, s{sXO_}")
        e(f"s_lshr_b32 s{sWO}, s{sWO}, s{sA}")
        e(f"s_lshl3_add_u32 s{sTI}, s{sB_}, s{sTI}")
        perms = perms + p3
    else:
        e(f"s_lshr_b32 s{sWO}, {sum(pm[0] << (4 * k) for k, pm in enumerate(perms)):#x}, s{sA}")
    e(f"s_and_b32 s{sWO}, s{sWO}, 15")
    e(f"s_lshl_b32 s{sXO_}, s{sWO}, 7")
    e(f"s_lshl2_add_u32 s{sB_}, s{sMT}, s{sWV}")
    e(f"s_lshl_b32 s{sB_}, s{sB_}, 17")
    e(f"s_mov_b32 s{sX + 2}, {63 * 2048 + 128}")
    e(f"s_mov_b32 s{sX + 3}, 0x20000")
    e(f"s_lshl_b32 s{sM0X}, s{sWV}, 14")
    e(f"s_mov_b32 m0, s{sM0X}")
    for q in range(4):
        e(f"s_mov_b32 s{sXQ + q}, {q * 16384 - (q & 3) * 1024}")
    nib = lambda d, s_: f"s_bfe_u32 s{d}, s{sPM + (s_ >> 3)}, {0x40000 + 4 * (s_ & 7):#x}"

    def w_off(q, base):
        if q:
            e(f"v_add_u32 v22, {64 * 4682}, v22")
        e("v_lshrrev_b32 v23, 16, v22")
        e("v_and_b32 v24, 3, v23")
        e(f"v_mad_u32_u24 v23, v23, s{sHA}, v{base}")
        e(f"v_mad_i32_i24 v{vWD + q}, v24, s{sHB}, v23")

    def w_setup1():
        e(f"v_lshlrev_b32 v{vL16}, 4, v0")
        e("v_mul_u32_u24 v22, 4682, v0")
        e(f"s_movk_i32 s{sHA}, 14112")
        e(f"s_movk_i32 s{sHB}, -7168")
        if wrow:
            e(f"s_movk_i32 s{sHA}, {7168 - 224}")
            for par in range(2):
                if par:
                    e("v_max_u32 v24, 8, v0")
                    e("v_subrev_u32 v24, 8, v24")
                else:
                    e("v_min_u32 v24, 55, v0")
                e("v_mul_u32_u24 v22, 4682, v24")
                e("v_lshrrev_b32 v22, 16, v22")
                e("v_lshlrev_b32 v24, 4, v24")
                e(f"v_mad_u32_u24 v{vWD + par}, v22, s{sHA}, v24")
                if wrow == 2:
                    e(f"v_cmp_{'gt' if par else 'le'}_u32 vcc, {8 if par else 56}, v0")
                    e("v_bfrev_b32 v24, 2")
                    e("s_nop 0")
                    e(f"v_cndmask_b32 v{vWD + par}, v{vWD + par}, v24, vcc")
        else:
            for q in range(4):
                w_off(q, vL16)
        e("s_lshl3_add_u32 s46, s42, s44")
        e(f"s_mul_i32 s{sWO}, s{sWO}, {WST}")
        e(f"s_lshr_b32 s{sA}, s{sWV}, 1")
        e(f"s_mul_i32 s{sA}, s{sA}, {4 * 7168}")
        e(f"s_mul_i32 s{sHLA}, s{sJ}, 224")
        e(f"s_add_u32 s{sA}, s{sA}, s{sHLA}")
        e(f"s_mov_b32 s{sW + 2}, {15 * WST + 60 * 7168}")
        e(f"s_mov_b32 s{sW + 3}, 0x20000")
        e(f"s_mul_i32 s{sM0W}, s{sWV}, {8192 if wrow else 7168}")

    def w_setup2():
        e(f"s_bitcmp1_b32 s{sWV}, 0")
        e(f"s_cselect_b32 s{sW}, s{sK + 4}, s{sK + 2}")
        e(f"s_cselect_b32 s{sW + 1}, s{sK + 5}, s{sK + 3}")
        e(f"s_add_u32 s{sW}, s{sW}, s{sA}")
        e(f"s_addc_u32 s{sW + 1}, s{sW + 1}, 0")

    def code_touch():
        e("; ---- bring this kernel's code into L2 ahead of the instruction fetch (4 lines per wave)")
        e("s_getpc_b64 s[4:5]")
        e("L_pc:")
        e(f"s_lshr_b32 s{sHLB}, s2, 3")
        e(f"s_lshl2_add_u32 s{sHLB}, s{sHLB}, s{sWV}")
        e(f"s_lshl_b32 s{sHLB}, s{sHLB}, 9")
        e(f"v_min_u32 v{vOUT}, 3, v0")
        e(f"v_lshl_add_u32 v{vOUT}, v{vOUT}, 7, s{sHLB}")
        e(f"v_min_u32 v{vOUT}, L_end-L_pc, v{vOUT}")
        b.vm(f"global_load_dword v{vFV}, v{vOUT}, s[4:5]")
    fast = O.get("fast", 1)
    if fast in (0, 2):
        code_touch()
    if fast == 0:
        w_setup1()
    e("s_waitcnt lgkmcnt(0)")
    stamp()

    m0_state = [(sM0X, 0)]

    def m0_ops(sreg, off):
        if m0_state[0] == (sreg, off):
            return []
        m0_state[0] = (sreg, off)
        return [[f"s_add_u32 m0, s{sreg}, {off}" if off else f"s_mov_b32 m0, s{sreg}"]]

    def pre_w(s, q):
        g = m0_ops(sM0W, sig(s) + (q >> 2) * 4096)
        if q == 0 and s:
            g += [[nib(sWO, s)], [f"s_mul_i32 s{sWO}, s{sWO}, {WST}"]]
        if wrow and q:
            g.append([f"s_add_u32 s{sWO}, s{sWO}, {8 * 7168 - 1024 if q != 4 else 8 * 7168 + 3072}"])
        return g

    def dma_w(s, q):
        if O.get("now") and s >= 3:
            b.vm_tag["W", s, q] = 0
            return
        b.vm(f"buffer_load_dwordx4 v{vWD + (q & 1 if wrow else q)}, {R('s', sW)}, s{sWO} offen offset:{(q & 3) * 1024} {O.get('wfl', '')} lds", ("W", s, q))

    def pre_x(s, q):
        g = m0_ops(sM0X, (2 * s + (q >> 2)) % 3 * 4096)
        if q == 0:
            if s:
                g += [[nib(sXO_, s)], [f"s_lshl_b32 s{sXO_}, s{sXO_}, 7"]]
            g.append([f"s_add_u32 s{sX}, s{sX0}, s{sXO_}", f"s_addc_u32 s{sX + 1}, s{sX0 + 1}, 0"])
        return g

    def dma_x(s, q):
        if O.get("nox") and s >= 2:
            b.vm_tag["X", s, q] = 0
            return
        b.vm(f"buffer_load_dwordx4 v{vXD + (q & 1)}, {R('s', sX)}, s{sXQ + q} offen offset:{(q & 3) * 1024} {O.get('xfl', '')} lds", ("X", s, q))

    def now(groups):
        for g in groups:
            for x in g:
                e(x)

    e(f"s_add_u32 s{sX0}, s{sK}, s{sB_}")
    e(f"s_addc_u32 s{sX0 + 1}, s{sK + 1}, 0")
    for q in range(4):
        now(pre_x(0, q))
        dma_x(0, q)
    if fast == 1:
        code_touch()
    if fast:
        w_setup1()
    w_setup2()
    for q in range(4):
        now(pre_w(0, q))
        dma_w(0, q)
    for q in range(4, 8):
        e(f"s_mov_b32 s{sXQ + q}, {q * 16384 - (q & 3) * 1024}")
    nx0 = 8
    for q in range(4, 8):
        now(pre_x(0, q))
        dma_x(0, q)
    for r_, pm in enumerate(perms):
        assert sorted(pm) == list(range(16))
        lo = sum(v << (4 * k) for k, v in enumerate(pm[:8]))
        hi = sum(v << (4 * k) for k, v in enumerate(pm[8:]))
        if r_ == 0:
            e(f"s_mov_b32 s{sPM}, {lo:#x}")
            e(f"s_mov_b32 s{sPM + 1}, {hi:#x}")
        else:
            e(f"s_cmp_eq_u32 s{sTI}, {r_}")
            e(f"s_cselect_b32 s{sPM}, {lo:#x}, s{sPM}")
            e(f"s_cselect_b32 s{sPM + 1}, {hi:#x}, s{sPM + 1}")
    e(f"v_add_u32 v28, 4096, v{vL16}")
    for q in range(4, 4 if wrow else 7):
        w_off(q, 28)
    pro_items = [("W", 0, q) for q in range(4, NWQ)] + [("X", 1, q) for q in range(4)] + [("W", 1, q) for q in range(NWQ)]
    npro = O.get("npro", 3)

    map2 = O.get("map2", 3)
    if map2 == 0:
        e("s_lshl2_add_u32 s47, s42, s43")
        e(f"s_mov_b32 s{sA}, s44")
    elif map2 == 1:
        e(f"s_lshr_b32 s{sA}, s42, 1")
        e(f"s_lshl3_add_u32 s47, s{sA}, s44")
        e(f"s_and_b32 s{sA}, s42, 1")
        e(f"s_lshl2_add_u32 s{sA}, s{sA}, s43")
    elif map2 in (2, 3):
        if map2 == 2:
            e(f"s_and_b32 s{sA}, s2, 3")
            e(f"s_lshl2_add_u32 s47, s{sA}, s43")
            e(f"s_mov_b32 s{sA}, s44")
        else:
            e("s_lshl3_add_u32 s47, s41, s44")
            e(f"s_and_b32 s{sA}, s42, 1")
            e(f"s_lshl2_add_u32 s{sA}, s{sA}, s43")
        e("s_lshr_b32 s41, s42, 1")
        e("s_xor_b32 s41, s41, 1")
    else:
        e("s_xor_b32 s41, s41, 1")
        if map2 == 4:
            e(f"s_and_b32 s{sA}, s42, 1")
            e(f"s_lshl1_add_u32 s{sA}, s41, s{sA}")
            e(f"s_lshl2_add_u32 s47, s{sA}, s43")
            e(f"s_mov_b32 s{sA}, s44")
        else:
            e("s_lshl3_add_u32 s47, s41, s44")
            e(f"s_and_b32 s{sA}, s42, 1")
            e(f"s_lshl2_add_u32 s{sA}, s{sA}, s43")
        e("s_lshr_b32 s41, s42, 1")
    e(f"s_and_b32 s{sB_}, s{sWV}, 1")
    e(f"s_lshl1_add_u32 s3, s{sA}, s{sB_}")
    e(f"s_lshr_b32 s{sA}, s{sWV}, 1")
    e(f"s_lshl1_add_u32 s{sSPIN}, s41, s{sA}")
    e("s_lshr_b32 s42, s46, 3")
    e("s_and_b32 s44, s46, 7")
    e(f"s_lshl_b32 s{sM0H}, s{sA}, 14")
    if O.get("dx"):
        m_ = {1: f"s_and_b32 s{sRT}, s47, 3", 2: f"s_bfe_u32 s{sRT}, s47, 0x20002", 3: f"s_lshr_b32 s{sRT}, s47, 3"}[O["dx"]]
        e(m_)
        for i in range(4):
            e(f"s_xor_b32 s{sTS + i}, s{sRT}, {i}")
            e(f"s_mul_i32 s{sTS + i}, s{sTS + i}, {112 * 2048}")
        e(f"s_xor_b32 s{sHLA}, s{sRT}, s{sB_}")
        e(f"s_and_b32 s{sHLA}, s{sHLA}, 1")
        e(f"s_lshl_b32 s{sHLA}, s{sHLA}, 10")
        e(f"v_add_u32 v29, s{sHLA}, v{vL16}")
        e(f"s_and_b32 s{sRT}, s{sRT}, 2")
        e(f"s_lshl_b32 s{sRT}, s{sRT}, 13")
        e(f"s_xor_b32 s{sRT + 1}, s{sRT}, 16384")
    e(f"s_lshl_b32 s{sB_}, s{sB_}, 10")
    if not O.get("dx"):
        e(f"v_add_u32 v29, s{sB_}, v{vL16}")
    e(f"v_add_u32 v28, s{sM0H}, v{vL16}")
    e(f"s_add_u32 s{sM0H}, s{sM0H}, s{sB_}")
    sWQ = sSPIN
    e("v_lshlrev_b32 v23, 1, v26")
    e("v_xor_b32 v23, v27, v23")
    e(f"v_lshl_add_u32 v{vDD}, v23, 4, v25")
    e("v_and_b32 v22, 15, v0")
    e("v_lshrrev_b32 v24, 1, v22")
    e("v_xor_b32 v24, v24, v26")
    e("v_lshlrev_b32 v24, 4, v24")
    e("v_lshl_add_u32 v24, v22, 7, v24")
    e(f"v_add_u32 v{vXR}, s{sM0X}, v24")
    e(f"v_xor_b32 v{vXR + 1}, 64, v{vXR}")
    e(f"v_lshlrev_b32 v{vFP}, 2, v22")
    e("v_lshrrev_b32 v24, 2, v0")
    e("v_and_b32 v25, 3, v0")
    e("v_mul_u32_u24 v26, 224, v24")
    if wrow:
        e("v_lshrrev_b32 v27, 4, v0")
        e("v_add_u32 v27, 1, v27")
        e("v_lshrrev_b32 v27, 1, v27")
        e("v_lshl_add_u32 v26, v27, 8, v26")
    e("v_lshl_add_u32 v26, v25, 3, v26")
    e(f"v_add_u32 v{vWR}, 65536, v26")
    e(f"v_add_u32 v{vWR2}, 131072, v26")
    e("v_lshlrev_b32 v26, 7, v24")
    e("v_lshl_add_u32 v26, v25, 3, v26")
    e(f"v_add_u32 v26, s{sM0X}, v26")
    e("v_bfe_u32 v27, v0, 3, 2")
    e(f"v_lshl_add_u32 v{vDR}, v27, 5, v26")
    for nb in range(1, 4):
        e(f"v_xor_b32 v{vDR + nb}, {32 * nb}, v{vDR}")
    e("v_lshrrev_b32 v24, 5, v0")
    e("v_and_b32 v25, 31, v0")
    e("v_lshlrev_b32 v25, 4, v25")
    e(f"v_lshl_add_u32 v{vHL}, v24, 10, v25")
    e(f"s_mov_b32 s{sF + 2}, 8192")
    e(f"s_mov_b32 s{sF + 3}, 0x20000")
    e(f"s_lshr_b32 s{sA}, s{sWV}, 1")
    e(f"s_lshl1_add_u32 s{sA}, s{sMT}, s{sA}")
    e(f"s_lshl2_add_u32 s{sB_}, s{sA}, s42")
    e(f"s_lshl_b32 s{sFP}, s{sB_}, 7")
    e(f"s_and_b32 s{sHA}, s{sWV}, 1")
    e(f"s_lshl1_add_u32 s{sHB}, s44, s{sHA}")
    e(f"s_lshl2_add_u32 s{sFP}, s{sHB}, s{sFP}")
    e("s_cmp_eq_u32 s2, 0")
    e("s_cbranch_scc1 L_clear")
    e("L_cleared:")
    slow.append("L_clear:")
    slow.extend(f"v_mov_b32 v{24 + x}, 0" for x in range(4))
    slow.extend([f"s_lshl_b32 s{sA}, s{sWV}, 11",
                 f"buffer_store_dwordx4 v[24:27], v{vL16}, {R('s', sF)}, s{sA} offen sc1",
                 f"buffer_store_dwordx4 v[24:27], v{vL16}, {R('s', sF)}, s{sA} offen offset:1024 sc1",
                 "s_branch L_cleared"])
    if O.get("wt"):
        e(f"s_and_b32 s{sA}, s46, 1")
        e(f"s_and_b32 s{sB_}, s45, 3")
        e(f"s_lshl2_add_u32 s{sB_}, s{sA}, s{sB_}")
        e(f"s_lshl_b32 s{sB_}, s{sB_}, 2")
        e(f"s_lshr_b32 s{sHLA}, s{sWV}, 1")
        e(f"s_add_u32 s{sB_}, s{sB_}, s{sHLA}")
        e(f"s_mul_i32 s{sB_}, s{sB_}, {4 * 7168}")
        e(f"s_mul_i32 s{sA}, s{sA}, 672")
        e(f"s_sub_u32 s{sB_}, s{sB_}, s{sA}")
        e(f"s_add_u32 s{sB_}, s{sB_}, 256")
        e("v_min_u32 v24, 23, v0")
        e("v_mul_u32_u24 v25, 0x5556, v24")
        e("v_lshrrev_b32 v25, 16, v25")
        e(f"v_mul_u32_u24 v26, {7168 - 384}, v25")
        e("v_lshl_add_u32 v26, v24, 7, v26")
        e(f"v_add_u32 v26, s{sB_}, v26")
        e(f"s_add_u32 s{sA}, s46, 1")
        e(f"s_bitcmp1_b32 s{sA}, 1")
        e(f"s_cselect_b32 s{sA}, 0, -1")
        e(f"v_and_b32 v26, s{sA}, v26")
        e(f"s_and_b32 s{sTS + 1}, s{sA}, {2 * WST}")
        e(f"s_mul_i32 s{sTS + 2}, s{sGR}, {(16 - O['wt']) // 2}")
    if O["cpos"]:
        e("s_mov_b32 s46, s4")
        e("s_mov_b32 s45, s5")
    if O.get("touchd", 1):
        e(f"s_lshl2_add_u32 s{sA}, s2, s{sWV}")
        if O.get("tall"):
            e(f"s_mul_i32 s{sA}, s{sA}, {56 * 128}")
        elif O.get("tlite"):
            e(f"s_add_u32 s{sB_}, s44, 1")
            e(f"s_bfe_u32 s{sB_}, s{sB_}, 0x10001")
            e(f"s_mov_b32 s{sHLA}, s{sB_}")
            e(f"s_lshr_b32 s{sB_}, s2, 6")
            e(f"s_and_b32 s{sA}, s{sA}, 127")
            e(f"s_lshl_b32 s{sB_}, s{sB_}, 7")
            e(f"s_add_u32 s{sA}, s{sA}, s{sB_}")
            e(f"s_lshr_b32 s{sB_}, s{sA}, 4")
            e(f"s_mul_i32 s{sB_}, s{sB_}, 28")
            e(f"s_and_b32 s{sA}, s{sA}, 15")
            e(f"s_add_u32 s{sA}, s{sA}, s{sB_}")
            e(f"s_add_u32 s{sA}, s{sA}, 12")
            e(f"s_lshl_b32 s{sA}, s{sA}, 13")
        else:
            e(f"s_lshr_b32 s{sB_}, s{sA}, 5")
            e(f"s_mul_i32 s{sB_}, s{sB_}, 56")
            e(f"s_and_b32 s{sA}, s{sA}, 31")
            e(f"s_add_u32 s{sA}, s{sA}, s{sB_}")
            e(f"s_add_u32 s{sA}, s{sA}, 24")
            e(f"s_lshl_b32 s{sA}, s{sA}, 12")
        TL = (56 if O.get("tall") else 64 if O.get("tlite") else 32) // len(O.get("tdpos", TDPOS))
        e(f"v_min_u32 v22, {TL - 1}, v0")
        if O.get("tlite"):
            e(f"s_cmp_eq_u32 s{sHLA}, 0")
            e(f"s_cselect_b32 s{sA}, s{sA}, 0")
            e(f"s_cselect_b32 s{sTS}, {TL * 128}, 0")
            e(f"s_cselect_b32 s{sB_}, -1, 0")
            e(f"v_and_b32 v22, s{sB_}, v22")
        e(f"v_lshl_add_u32 v22, v22, 7, s{sA}")
        e(f"s_mov_b32 s4, s{sK + 6}")
        e(f"s_mov_b32 s5, s{sK + 7}")
    e(f"s_mul_i32 s{sA}, s{sWQ}, {896 * 2048}")
    e(f"s_lshl_b32 s{sB_}, s{sNB}, 7")
    e(f"s_add_u32 s{sA}, s{sA}, s{sB_}")
    e(f"s_add_u32 s{sD}, s{sK + 6}, s{sA}")
    e(f"s_addc_u32 s{sD + 1}, s{sK + 7}, 0")
    e(f"s_mov_b32 s{sD + 2}, {895 * 2048 + 128}")
    e(f"s_mov_b32 s{sD + 3}, 0x20000")
    e(f"s_lshr_b32 s{sA}, s{sFP}, 7")
    e(f"s_mul_i32 s{sA}, s{sA}, {28 * 8192}")
    e(f"s_add_u32 s{sA}, s{sA}, {HOFF}")
    e(f"s_add_u32 s{sHS}, s{sF}, s{sA}")
    e(f"s_addc_u32 s{sHS + 1}, s{sF + 1}, 0")
    e(f"s_mov_b32 s{sHS + 2}, {28 * 8192}")
    e(f"s_mov_b32 s{sHS + 3}, 0x20000")
    e(f"s_lshl2_add_u32 s{sA}, s{sMB}, s{sWQ}")
    e(f"s_lshl_b32 s{sFC}, s{sA}, 7")
    e(f"s_mul_i32 s{sA}, s{sA}, {28 * 8192}")
    e(f"s_add_u32 s{sA}, s{sA}, {HOFF - (2048 if O.get('dx') else 0)}")
    e(f"s_add_u32 s{sHL}, s{sF}, s{sA}")
    e(f"s_addc_u32 s{sHL + 1}, s{sF + 1}, 0")
    e(f"s_mov_b32 s{sHL + 2}, {28 * 8192 + 2048}")
    e(f"s_mov_b32 s{sHL + 3}, 0x20000")
    e(f"s_lshl_b32 s{sA}, s{sHA}, 1")
    e(f"s_xor_b32 s{sA}, s{sA}, s42")
    e(f"s_xor_b32 s{sA}, s{sA}, 3")
    e(f"s_xor_b32 s{sB_}, s{sA}, 1")
    e(f"s_lshl_b32 s{sA}, s{sA}, 11")
    e(f"s_lshl_b32 s{sB_}, s{sB_}, 11")
    e(f"s_add_u32 s{sHA}, s44, 4")
    e(f"s_lshl_b32 s{sHA}, s{sHA}, 13")
    e(f"s_add_u32 s{sHB}, s{sHA}, s{sB_}")
    e(f"s_add_u32 s{sHA}, s{sHA}, s{sA}")
    e(f"s_lshr_b32 s{sHLA}, s44, 1")
    e(f"s_lshl_b32 s{sHLA}, s{sHLA}, 13")
    e(f"s_and_b32 s{sHLB}, s44, 1")
    e(f"s_lshl_b32 s{sHLB}, s{sHLB}, 9")
    e(f"s_add_u32 s{sHLA}, s{sHLA}, s{sHLB}")
    e(f"s_add_u32 s{sHLB}, s{sHLA}, s{sB_}")
    e(f"s_add_u32 s{sHLA}, s{sHLA}, s{sA}")
    e(f"s_lshl2_add_u32 s{sA}, s{sMB}, s{sWQ}")
    e(f"s_lshl_b32 s{sA}, s{sA}, 16")
    e(f"s_lshl_b32 s{sB_}, s{sNB}, 7")
    e(f"s_add_u32 s{sA}, s{sA}, s{sB_}")
    e(f"s_add_u32 s{sO}, s{sK + 8}, s{sA}")
    e(f"s_addc_u32 s{sO + 1}, s{sK + 9}, 0")
    e(f"s_mov_b32 s{sO + 2}, {31 * 2048 + 128}")
    e(f"s_mov_b32 s{sO + 3}, 0x20000")
    e(f"s_mov_b32 s{sG}, s{sK + 10}")
    e(f"s_mov_b32 s{sG + 1}, s{sK + 11}")
    e(f"s_mov_b32 s{sG + 2}, 256")
    e(f"s_mov_b32 s{sG + 3}, 0x20000")
    e(f"s_or_b32 s{sCP}, s2, s{sWV}")
    e(f"s_mov_b32 s{sNL2E}, 0xbfb8aa3b")
    if O["cpos"]:
        e("s_mov_b32 s47, s45")
    e(f"s_lshl2_add_u32 s{sXFO}, s{sNB}, s{sFC}")
    e(f"s_add_u32 s{sXFO}, s{sXFO}, 64")
    e(f"s_xor_b32 s{sXFI}, s{sXFO}, 256")
    e(f"s_lshr_b32 s{sA}, s{sFC}, 3")
    e(f"s_add_u32 s{sA}, s{sA}, s{sNB}")
    e(f"s_lshl_b32 s{sXO}, s{sA}, 13")
    e(f"s_xor_b32 s{sXI}, s{sXO}, {32 << 13}")

    def warm():
        e("; ---- instruction prefetch stops at 4 KiB boundaries: while the first loads are under way every wave follows a short chain")
        e("; ---- of branches (L_padN, taken only while vcc != 0) through the first line of the code pages")
        e("s_mov_b64 vcc, 1")
        for w_ in range(3):
            e(f"s_cmp_eq_u32 s{sWV}, {w_}")
            e(f"s_cbranch_scc1 L_pad{w_}")
        e("s_branch L_pad3")
        e("L_warm:")
        e("s_mov_b64 vcc, 0")
    rest = [("X", 0, q) for q in range(nx0, 8)] + pro_items[:npro]
    wat = min(O.get("wat", 0), len(rest))
    for n_, (k, s_, q) in enumerate(rest + [(None, 0, 0)]):
        if n_ == wat and O.get("pads", 1):
            warm()
        if k:
            now((pre_w if k == "W" else pre_x)(s_, q))
            (dma_w if k == "W" else dma_x)(s_, q)
    if O.get("pads", 1):
        e("s_branch L_main")
        e("@SLOW@")
        e(".p2align 12")
        e("L_main:")

    ops = []

    def add(kind, fn, pos, dead=None, deps=()):
        if isinstance(fn, (list, tuple)):
            g = list(fn)
            fn = lambda g=g: [e(x) for x in g]
        o = Op(kind, fn, pos, pos + 12 if dead is None else dead, [d for d in deps if d is not None], len(ops))
        ops.append(o)
        return o

    slots = []
    valu = defaultdict(list)
    NM = 28 * 56
    NT = NM + 224
    NE = 0
    N2 = NT + NE
    xset = lambda t: t & 3
    WR = (64, 68, 72, 76, 80, 84, 248, 252)
    wreg = lambda F: WR[F % 8]

    def rd_w(F, t, i, half):
        s, p, gu, blk = t >> 1, t & 1, i & 1, i >> 1
        off = sig(s) + (gu + 2 * half) * (8192 if wrow else 7168) + p * (4096 if wrow else 3584) + blk * 32
        v, off = (vWR, off - 65536) if off < 131072 else (vWR2, off - 131072)
        r = wreg(F) + 2 * half
        if O.get("skipw") and half == 0 and 14 <= F < 28 * 14:
            return lambda: b.lg_tag.__setitem__(("wf", F, half), 0)
        return lambda: b.lg(f"ds_read_b64_tr_b16 {R('a', r, 2)}, v{v} offset:{off}", ("wf", F, half))

    def rd_x(t, jm):
        s, p = t >> 1, t & 1
        return lambda: b.lg(f"ds_read_b128 {R('a', aXF + 16 * xset(t) + 4 * jm)}, v{vXR + p} offset:{(2 * s + (jm >> 1)) % 3 * 4096 + (jm & 1) * 2048}", ("xf", t, jm))

    beta = lambda t: 56 * t + O.get("beta", 42)
    nb2 = O.get("nb2", 4)
    groups = []
    for s in range(14):
        if 2 * s < nb2:
            groups += [[(t, i)] for t in (2 * s, 2 * s + 1) for i in range(14)]
        else:
            groups += [[(2 * s, i), (2 * s + 1, i)] for i in range(14)]
    groups += [[(t, gu), (t + 1, gu)] for t in (28, 30) for gu in range(2)]
    groups += [[(28 + tt, i) for tt in range(4)] for i in range(2, 14)]
    frs = [f for g in groups for f in g]
    fuse, luse, adone = {}, {}, {}
    started = set()
    F0 = nchain = 0
    for gi, g in enumerate(groups):
        for jm in (range(3, -1, -1) if gi & 1 else range(4)):
            for k in (range(len(g) - 1, -1, -1) if nchain & 1 else range(len(g))):
                t, i = g[k]
                F = F0 + k
                fuse.setdefault(F, len(slots))
                luse[F] = len(slots)
                d = R("v", acc1(i >> 1, i & 1, jm))
                c = d if (i, jm) in started else "0"
                started.add((i, jm))
                adone[i, jm] = len(slots)
                slots.append((f"v_mfma_f32_16x16x32_bf16 {d}, {R('a', wreg(F))}, {R('a', aXF + 16 * xset(t) + 4 * jm)}, {c}",
                              [("wf", F, 1), ("xf", t, jm)], []))
            nchain += 1
        F0 += len(g)
    pro = []
    bar = {}
    prev = None
    barw = {}
    LA = O.get("la", 20)
    pos = -100
    gate = None
    for F, (t, i) in enumerate(frs):
        pos = max(pos + 2, fuse[F] - LA, luse.get(F - 8, -100) + 1, gate.pos + 1 if gate else -100)
        for half in range(2):
            if fuse[F] < 12:
                pro.append(rd_w(F, t, i, half))
            else:
                prev = add("D", rd_w(F, t, i, half), max(pos, 0) + half, fuse[F] - 4, [prev, gate])
        gate = None
        if F < 28 * 14 and F % 14 == 13 and (F // 14 & 1 or F // 14 < nb2):
            t = F // 14
            s, p = (t + 1) >> 1, (t + 1) & 1
            need = [("W", s, q) for q in (range(4) if p == 0 and t + 1 < nb2 else range(NWQ))]
            if t == 27:
                need = [("W", s2, q) for s2 in (14, 15) for q in range(NWQ)]
            assert pos + 5 <= beta(t), (t, pos)
            barw[t] = add("S", lambda need=need, F=F: b.wait(vm=need, lg=[("wf", F, 1)]), beta(t), beta(t) + 1, [prev])
            gate = bar[t] = add("S", ["s_barrier" if not O.get("nobar") or t < 4 or t == 27 else "s_nop 0"], beta(t) + 1, beta(t) + 2, [barw[t]])
    xpos = {}
    xrd = {}
    xw = {}
    for t in range(1 if nb2 else 2, 32):
        for jm in range(4):
            s, a = t >> 1, jm >> 1
            k = 2 * (jm & 1) + (t & 1)
            if t == 1:
                pos = 2 + 3 * jm
            elif s == 1:
                pos = 56 + (18, 34)[a] + k
            elif s == 15:
                pos = NM + 4 * a + k
            else:
                pos = 56 * (2 * (s - 1) + a) + 34 + k
            xpos[t, jm] = pos
            if t > 1 and (s, a) not in xw:
                xw[s, a] = add("S", lambda s=s, a=a: b.wait(vm=[("X", s, 4 * a + 3)]), pos - 1, pos + 4)
            xrd[t, jm] = add("D", rd_x(t, jm), pos, pos + 5, [xw.get((s, a))])
    xlast = lambda s, a: max(((t, jm) for t in (2 * s, 2 * s + 1) for jm in (2 * a, 2 * a + 1) if (t, jm) in xpos), key=lambda x: xpos[x])
    xall = lambda s, a: [(t, jm) for t in (2 * s, 2 * s + 1) for jm in (2 * a, 2 * a + 1)]

    usets = ([("a", aDF + 16 * i) for i in range(10)] + [("v", r) for r in (48, 32, 80, 96, 64, 144, 160, 176, 128, 112)])
    NS = len(usets)
    ureg = lambda u: usets[u % NS]
    unit_lds = lambda slot: slot * 4096

    def unit_row(u, q):
        if u < 4:
            return 112 * (2 * u + (q & 1)) + 8 * (q >> 1)
        return 112 * ((u - 4) & 7) + 16 + 32 * ((u - 4) >> 3) + 8 * q

    def pre_d(u, sl, q):
        if O.get("dx"):
            c_ = unit_row(u & ~3, q) * 2048 - q * 1024
            return m0_ops(sM0X, unit_lds(sl)) + [[f"{'s_lshl1_add_u32' if u < 4 else 's_add_u32'} s{sA}, s{sTS + (u & 3)}, {c_}"]]
        return m0_ops(sM0X, unit_lds(sl)) + [[f"s_mov_b32 s{sA}, {unit_row(u, q) * 2048 - q * 1024}"]]

    def dma_d(u, q):
        if u >= O.get("nod", 99):
            b.vm_tag["D", u, q] = 0
            return
        b.vm(f"buffer_load_dwordx4 v{vDD}, {R('s', sD)}, s{sA} offen offset:{q * 1024} {O.get('dfl', '')} lds", ("D", u, q))

    def rd_d(u, slot, nb, half):
        off = unit_lds(slot) + half * 2048
        p_, r_ = ureg(u)
        return lambda: b.lg(f"ds_read_b64_tr_b16 {R(p_, r_ + 4 * nb + 2 * half, 2)}, v{vDR + nb} offset:{off}", ("df", u, nb, half))

    chain = [None]

    def add_dma(groups, fn, pos, dead, deps=(), sdeps=()):
        deps = list(deps)
        p = chain[0]
        for gi, g in enumerate(groups):
            p = add("S", g, pos - len(groups) + gi - O.get("sear", 1), dead - 1, [p] + list(sdeps))
            p.setup = True
        chain[0] = add("V", fn, pos, dead, [p] + deps)
        return chain[0]

    NPF = O.get("npf", 10)
    done = set(pro_items[:npro]) | {("W", 0, q) for q in range(4)} | {("X", 0, q) for q in range(8)}
    queue = {"W": [("W", s, q) for s in range(16) for q in range(NWQ)], "X": [("X", s, q) for s in range(16) for q in range(8)],
             "D": [("D", u, q) for u in range(NPF) for q in range(4)]}
    for k in queue:
        queue[k] = [it for it in queue[k] if it not in done]
    gm, gh = O.get("gm", 8.0), O.get("gh", 5.0)
    d0, dper, dlat = O.get("d0", 150), O.get("dper", 138), O.get("dlat", 105)
    dlast = {}
    dfree = [0]

    def window(k, s, q):
        if k == "W":
            tb = 2 * (s - 3) + (q >= (4 if wrow else 3))
            if s >= 3 and tb not in bar:
                tb += 1
            tl = min(2 * s - 1 + (q >= 4), 27)
            if tl not in bar:
                tl -= 1
            return (beta(tb) + 2 if s >= 3 else 0), beta(tl), tb, tl
        if k == "X":
            hh = 2 * s + (q >> 2) - 3
            return (xpos[xlast(hh >> 1, hh & 1)] + 7 if hh >= (0 if nb2 else 2) else 0), xw[s, q >> 2].pos, hh, None
        early = max(O["dpos"][s] if "dpos" in O else d0 + dper * s, dfree[0])
        return early, early + O.get("dprio", 60), None, None
    fpos = 1.0
    lastk = None
    while any(queue.values()):
        heads = [queue[k][0] for k in queue if queue[k]]
        avail = [it for it in heads if window(*it)[0] <= fpos]
        if not avail:
            fpos = min(window(*it)[0] for it in heads)
            continue
        k, s, q = min(avail, key=lambda it: window(*it)[1] + (O.get("alt", 0) if it[0] == lastk else 0))
        lastk = k
        queue[k].pop(0)
        early, lim, a1, a2 = window(k, s, q)
        pos = int(fpos)
        assert pos + 2 < lim or k == "D", (k, s, q, pos, lim)
        if O.get("verbose"):
            print(k, s, q, "early", early, "issue", pos, "lim", lim, "ahead", lim - pos)
        deps = []
        if k == "W":
            o = add_dma(pre_w(s, q), lambda s=s, q=q: dma_w(s, q), pos, pos + 3, [bar[a1]] if s >= 3 else [])
            barw[a2].deps.append(o)
        elif k == "X":
            if a1 >= 0 and q & 3 == 0:
                tags = [("xf",) + x for x in xall(a1 >> 1, a1 & 1)]
                deps.append(add("S", lambda tags=tags: b.wait(lg=tags), pos - 1, pos + 3, [xrd.get(x) for x in xall(a1 >> 1, a1 & 1)]))
            o = add_dma(pre_x(s, q), lambda s=s, q=q: dma_x(s, q), pos, pos + 3, deps)
            xw[s, q >> 2].deps.append(o)
        else:
            if s and q == 0:
                deps.append(add("S", lambda s=s: b.wait(lg=[("df", s - 1, 3, 1)]), pos - 1, pos + 3, [dlast[s - 1]]))
            o = add_dma(pre_d(s, 3, q), lambda s=s, q=q: dma_d(s, q), pos, pos + 3, deps)
            if q == 3:
                r0 = pos + dlat
                dp = add("S", lambda s=s: b.wait(vm=[("D", s, 3)]), r0 - 1, r0 + 6, [o])
                for kk in range(8):
                    dp = add("D", rd_d(s, 3, kk & 3, kk >> 2), r0 + kk, r0 + kk + 10, [dp])
                dlast[s] = dp
                dfree[0] = r0 + 16
        if k != "D":
            last_dma = pos
        if k != "D" and s in O.get("miss", (4, 8, 12)) and not any(it[1] == s for kk in "WX" for it in queue[kk]):
            fpos += O.get("pause", 0)
        fpos += (gm if (k != "D" and s in O.get("miss", (4, 8, 12))) else gh) * (O.get("gw", 1.0) if k == "W" else 1.0)

    touches = []
    if O.get("touchd", 1):
        tps = O.get("tdpos", TDPOS)
        for i, tp in enumerate(tps):
            touches.append(add("V", lambda: b.vm("global_load_dword v23, v22, s[4:5]", "touch"), tp, tp + 3))
            if i + 1 < len(tps):
                valu[tp + 5].append(f"v_add_u32 v22, s{sTS}, v22" if O.get("tlite") else f"v_add_u32 v22, {TL * 128}, v22")

    if O.get("wt"):
        p_ = None
        for P_ in range(1, O.get("wtn", 6)):
            tp = max(112 * (2 * P_) - O.get("wta", 336), 2 + 8 * P_)
            p_ = add("S", [f"s_add_u32 s{sRT}, s{sTS + 2}, {P_}"], tp - 4, tp, [p_])
            p_ = add("S", [f"s_and_b32 s{sRT}, s{sRT}, 7"], tp - 3, tp, [p_])
            p_ = add("S", [f"s_mul_i32 s{sRT}, s{sRT}, s{sTS + 1}"], tp - 2, tp, [p_])
            p_ = add("V", lambda: b.vm(f"buffer_load_dword v25, v26, {R('s', sW)}, s{sRT} offen", "touch"), tp, tp + 3, [p_])
            touches.append(p_)
    if O.get("codepf", 1):
        for tp in O.get("cpos", (1490,)):
            assert tp < NM - 60
            touches.append(add("V", lambda: b.vm(f"global_load_dword v24, v{vOUT}, s[46:47]", "touch"), tp, tp + 3))
    if touches:
        add("S", lambda: b.wait(vm=["touch"]), NM + 12, NM + 18, touches)

    add("X", [f"s_cmp_eq_u32 s{sCP}, 0", "s_cbranch_scc1 L_announce", "L_announced:"], beta(3) + 4, None, [bar[3]])
    slow.extend(["L_announce:", f"v_mov_b32 v{vFV}, 1", "s_mov_b64 exec, 1",
                 f"buffer_store_dword v{vFV}, off, {R('s', sG)}, 0 sc1", "s_mov_b64 exec, -1", "s_branch L_announced"])

    def poll(tag, srd, voff, soff, val, pos_issue, pos_check, deps=()):
        ld = (f"buffer_load_dword v{vFV}, off, {R('s', srd)}, {soff} sc1" if voff is None else
              f"buffer_load_dword v{vFV}, v{voff}, {R('s', srd)}, {soff} offen sc1")
        if O.get("nopoll"):
            val = 0
        o1 = add("V", lambda: b.vm(ld, tag), pos_issue, pos_issue + 3, deps)
        o2 = add("S", lambda: b.wait(vm=[tag]), pos_check - 1, pos_check + 1, [o1])
        o3 = add("X", [f"v_cmp_gt_u32 vcc, {val}, v{vFV}", f"s_cbranch_vccnz L_slow_{tag}", f"L_back_{tag}:"], pos_check, pos_check + 1, [o2])
        slow.extend([f"L_slow_{tag}:", f"s_mov_b32 s{sSPIN}, 0", f"L_spin_{tag}:", ld,
                     f"s_add_u32 s{sSPIN}, s{sSPIN}, 1", f"s_cmp_gt_u32 s{sSPIN}, 0x40000",
                     "s_cbranch_scc1 L_end", "s_waitcnt vmcnt(0)",
                     f"v_cmp_gt_u32 vcc, {val}, v{vFV}", f"s_cbranch_vccnz L_spin_{tag}", f"s_branch L_back_{tag}"])
        return o3
    pcnt = poll("cnt", sG, None, "0", 1, 56 * 16 + 50, 56 * 19 + 50)

    assert last_dma + 4 < NM - 24
    vHD, vHR, vHR2, vPW, vPR, vHD2 = 5, 6, 7, 8, 9, 10
    aset = [f"v_mov_b32 v{vHD}, v29", f"v_add_u32 v{vHR}, 65536, v28", f"v_add_u32 v{vHR2}, 131072, v28",
            f"v_lshl_add_u32 v{vPW}, v0, 2, s{sM0X}", f"v_xor_b32 v{vPR}, 32768, v{vPW}",
            f"v_sub_u32 v{vHD2}, v29, v{vL16}", f"v_lshl_add_u32 v{vHD2}, v{vHD2}, 3, v{vL16}"]
    if O.get("full"):
        aset += ["v_and_b32 v2, 7, v0", "v_lshlrev_b32 v2, 11, v2", f"v_bfe_u32 v{vOUT}, v0, 3, 1", f"v_lshl_add_u32 v2, v{vOUT}, 6, v2"]
    elif not O.get("tr"):
        aset += ["v_and_b32 v2, 15, v0", "v_lshlrev_b32 v2, 11, v2"]
    aset += [] if O.get("tr") else [ f"v_bfe_u32 v{vOUT}, v0, 4, 1",
             f"v_lshl_add_u32 v2, v{vOUT}, 5, v2", f"v_lshrrev_b32 v{vOUT}, 5, v0", f"v_lshl_add_u32 v{vOUT}, v{vOUT}, 4, v2"]
    if O.get("lin"):
        aset += ["v_lshrrev_b32 v2, 3, v0", "v_lshlrev_b32 v2, 11, v2", f"v_and_b32 v{vOUT}, 7, v0", f"v_lshl_add_u32 v{vOUT}, v{vOUT}, 4, v2"]
    for i, x in enumerate(aset):
        valu[NM - 24 + i].append(x)

    hout = lambda blk, jm: acc1(blk, 0, jm) if blk < 5 else 112 + 4 * jm

    def epi(blk):
        ins = []
        for j0 in (0, 2):
            g = [acc1(blk, 0, j0) + x for x in range(8)]
            t = [vTMP + x for x in range(8)]
            at = max(adone[2 * blk, j0], adone[2 * blk, j0 + 1]) + 7
            ins += [(at, f"v_mul_f32 v{t[x]}, s{sNL2E}, v{g[x]}") for x in range(8)]
            ins += [(at, f"v_exp_f32 v{t[x]}, v{t[x]}") for x in range(8)]
            ins += [(at, f"v_add_f32 v{t[x]}, 1.0, v{t[x]}") for x in range(8)]
            ins += [(at, f"v_rcp_f32 v{t[x]}, v{t[x]}") for x in range(8)]
            ins += [(at, f"v_mul_f32 v{g[x]}, v{g[x]}, v{t[x]}") for x in range(8)]
        for j0 in (2, 0):
            g = [acc1(blk, 0, j0) + x for x in range(8)]
            u = [acc1(blk, 1, j0) + x for x in range(8)]
            at = max(adone[2 * blk + 1, j0], adone[2 * blk + 1, j0 + 1]) + 7
            ins += [(at, f"v_mul_f32 v{u[x]}, v{g[x]}, v{u[x]}") for x in range(8)]
            for x in range(0, 8, 2):
                jm = j0 + (x >> 2)
                if blk == 0:
                    d = acc1(0, 0, j0) + (x >> 1)
                elif blk & 1:
                    d = hout(blk, jm) + ((x >> 1) & 1)
                else:
                    d = hout(blk - 1, jm) + 2 + ((x >> 1) & 1)
                ins.append((at, f"v_cvt_pk_bf16_f32 v{d}, v{u[x]}, v{u[x + 1]}"))
            if blk == 0:
                d = acc1(0, 0, j0)
                ins.append((at, "s_nop 1"))
                ins.append((at, f"v_permlane32_swap_b32 v{d}, v{d + 2}"))
                ins.append((at, f"v_permlane32_swap_b32 v{d + 1}, v{d + 3}"))
                ins.append((at, ("st", f"buffer_store_dwordx4 {R('v', d)}, v{vHL}, {R('s', sHS)}, s{sHLB if j0 else sHLA} offen sc1", 1, None)))
            elif not blk & 1:
                r = sHB if j0 else sHA
                for jm in (j0, j0 + 1):
                    ins.append((at, ("st", f"buffer_store_dwordx4 {R('v', hout(blk - 1, jm))}, v{vL16}, {R('s', sHS)}, s{r} offen offset:{(jm & 1) * 1024} sc1",
                                     1 + blk // 2, f"s_add_u32 s{r}, s{r}, 65536" if jm & 1 and blk < 6 else None)))
        return ins

    tslot = lambda n: 17 if n < NM else 19 if n < NM + 26 else O.get("tt", 34) if n < NT else 12 + 560 // O.get("e6", 60) if n < NT + 2 + O.get("e6", 60) else O.get("t2", 17)
    T = {NM - 16: 0}
    for n in range(NM - 16, NT + NE + 896 + 200):
        T[n + 1] = T[n] + tslot(n)

    def at_time(t):
        n = NM - 16
        while T[n] < t:
            n += 1
        return n
    cost = lambda x: 0 if isinstance(x, tuple) else 2 if ("exp" in x or "rcp" in x) else 1
    last_store = {}
    stimes = []
    fp = 0.0
    edone = {}
    for blk in range(7):
        for at, x in epi(blk):
            if isinstance(x, tuple):
                ps = max(pos + 1, at_time(stimes[-1] + O.get("sg%d" % x[2], O.get("sg", 400))) if stimes else 0)
                stimes.append(T[ps])
                o = add("V", lambda x=x: b.vm(x[1], ("H", x[2])), ps, ps + 2, [last_store.get(x[2])])
                last_store[x[2]] = o
                if x[3]:
                    add("S", [x[3]], ps, ps + 8, [o])
            else:
                fp = max(fp, at)
                pos = int(fp)
                valu[pos].append(x)
                fp += cost(x) / (O.get("er0", 5.0) if blk == 0 else O.get("er", 4.4) if pos < NT else O.get("er2", 2.5))
        edone[blk] = pos + 1
    EE = edone[6]
    assert edone[5] <= NT + 30 and EE <= NT + 94
    if O.get("verbose"):
        print("epilogue ends", {k: v - NM for k, v in edone.items()})

    flagop = {}

    def flag(stage, pos, soff=sFP, val=None):
        valu[pos - 2].append(f"v_mov_b32 v2, {stage if val is None else val}")
        o = add("S", lambda: b.wait(vm=[("H", stage)]), pos - 1, pos + 1, [last_store[stage], pcnt])

        def f():
            e("s_mov_b64 exec, 1")
            b.vm(f"buffer_store_dword v2, off, {R('s', sF)}, s{soff} sc1")
            e("s_mov_b64 exec, -1")
        flagop[stage] = add("X", f, pos, pos + 2, [o])
    for st in range(1, 5):
        if st == 3 and O.get("no3"):
            continue
        flag(st, at_time(T[last_store[st].pos] + O.get("fd%d" % st, O.get("fd", 1000))))

    KL = 16
    JL = [0, 2, 1, 3, 4, 5, 6, 7]
    quads = [(k0, jl) for k0 in range(0, 28 - KL, 4) for jl in range(8)] + [(k0, jl) for jl in JL for k0 in range(28 - KL, 28, 4)]
    frags = [(k0 + k, jl) for k0, jl in quads for k in range(4)]
    hreg = lambda H: WR[H % 8]
    started = set()
    nchain = 0
    for Q, (k0, jl) in enumerate(quads):
        for nb in (range(4) if Q & 1 else range(3, -1, -1)):
            for k in (range(3, -1, -1) if nchain & 1 else range(4)):
                ks, H = k0 + k, 4 * Q + k
                d = R(acc2f(jl), acc2(jl, nb))
                c = d if (jl, nb) in started else "0"
                started.add((jl, nb))
                slots.append((f"v_mfma_f32_16x16x32_bf16 {d}, {R(ureg(ks)[0], ureg(ks)[1] + 4 * nb)}, {R('a', hreg(H))}, {c}",
                              [("df", ks, nb, 1), ("hf", H)], []))
            nchain += 1
    NEND = len(slots)
    first_use = lambda u: N2 + 16 * min(H >> 2 for H, (ks, jl) in enumerate(frags) if ks == u)
    last_use = lambda u: N2 + 16 * max(H >> 2 for H, (ks, jl) in enumerate(frags) if ks == u) + 15
    HB = [131072, 65536, 98304]

    beta2 = lambda g: N2 + 64 * g + O.get("beta2", 46) if g >= 0 else NT - O.get("beta2i", 13)
    b2w, b2 = {}, {}
    b2lg = defaultdict(list)
    hp = None
    for g in range(-1, 14):
        if g >= 0:
            for i in range(16):
                H = 16 * g + i
                pos = N2 + 16 * ((H >> 2) - 1) + O.get("hsp", 2) * (H & 3)
                if i < 4:
                    pos = max(pos, beta2(g - 1) + 2 + (H & 3))
                off = HB[g % 3] + i * 1024
                v, off = (vHR, off - 65536) if off < 131072 else (vHR2, off - 131072)
                txt = f"ds_read_b128 {R('a', hreg(H))}, v{v} offset:{off}"
                hp = add("D", lambda txt=txt, H=H: b.lg(txt, ("hf", H)), pos, max(pos + 1, min(pos + 5, N2 + 16 * (H >> 2) - 4)), [hp, b2[g - 1] if i == 0 else None])
            b2lg[g].append(("hf", 16 * g + 15))
        else:
            hp = prev
            b2lg[g].append(("wf", len(frs) - 1, 1))
        if g < 13:
            b2w[g] = add("S", lambda g=g: b.wait(vm=[("h", 8 * g + 15)], lg=b2lg[g]), beta2(g), beta2(g) + 1, [hp])
            b2[g] = add("S", ["s_barrier" if not O.get("nobar") else "s_nop 0"], beta2(g) + 1, beta2(g) + 2, [b2w[g]])

    VG = O.get("vg", 70)
    LAT = O.get("lat", 900)
    pf = O.get("pollpf", 900)
    SK = O.get("sk", 100)

    hpos = {}
    h0 = NM + O.get("h0", 150)
    for pi in range(112):
        g, i = pi >> 3, pi & 7
        if g == 0:
            hpos[pi] = at_time(T[h0] + i * VG)
        elif g <= 2:
            hpos[pi] = at_time(T[beta2(-1) + 2] + (pi - 8) * O.get("vg1", 75) + (O.get("g2d", 0) + (pi - 16) * O.get("vg2", 40) if g == 2 else 0))
        else:
            hpos[pi] = max(beta2(g - 3) + 3 + (8 if g < O.get("gq", 9) else O.get("hq", 8)) * i, hpos[pi - 1] + O.get("hmin", 4))
    slot_free, slot_dep = {}, {}
    for sl, (s_, a) in enumerate(((15, 0), (15, 1), (14, 1))):
        slot_free[sl] = xpos[xlast(s_, a)] + 7
        slot_dep[sl] = ([xrd[x] for x in xall(s_, a)], [("xf",) + x for x in xall(s_, a)])
    slot_free[3] = max(dfree[0], NM - 16)
    slot_dep[3] = ([dlast[NPF - 1]], [("df", NPF - 1, 3, 1)]) if NPF else ([], [])
    htimes = sorted(T[p_] for p_ in hpos.values())
    tn = 0
    rdiv = []
    dmas = []
    for u in range(NPF, 28):
        sl = min(slot_free, key=lambda x: (slot_free[x], x))
        dep, tag = slot_dep[sl]
        dps = []
        for q in range(4):
            tn = max(tn, T[slot_free[sl]])
            while True:
                gapd = VG if tn < T[N2] else O.get("vgd", 150)
                keep = gapd - 8 if tn < T[N2] else 50
                near = [t + keep for t in htimes if abs(t - tn) < keep]
                near += [t + SK for t in stimes if t - 40 < tn < t + SK]
                if not near:
                    break
                tn = max(near)
            pos = at_time(tn)
            dps.append(pos)
            tn += gapd
        ready = at_time(T[pos] + LAT)
        free = {10: edone[0], 11: last_store[1].pos + 4, 12: edone[1], 13: edone[2], 14: last_store[2].pos + 4, 15: edone[3],
                16: edone[4], 17: edone[4], 18: last_store[3].pos + 4, 19: last_store[4].pos + 4}.get(
            u, NM if u < NS else last_use(u - NS) + 1)
        r0 = max(min(ready, first_use(u) - 26), free, pos + 4)
        while True:
            sp = 1 if r0 < NT else 2
            r1 = int(r0 + 8 * sp)
            clash = [iv for iv in rdiv if iv[0] < r1 and r0 < iv[1]]
            if not clash:
                break
            r0 = max(iv[1] for iv in clash)
        rdiv.append((r0, r1))
        assert r1 <= first_use(u) - 4, (u, r0, first_use(u))
        if O.get("verbose"):
            print("unit", u, "slot", sl, "dma", dps, "read", r0, "use", first_use(u))
        ws = []
        k = 0
        dp = {11: last_store[1], 14: last_store[2], 18: last_store[3], 19: last_store[4]}.get(u)
        for half in range(2):
            p_ = int(r0 + sp * k)
            w = add("S", lambda u=u, half=half: b.wait(vm=[("D", u, 2 * half + 1)]), p_ - 1, p_ + 3)
            ws.append(w)
            for nb in range(4):
                p_ = int(r0 + sp * k)
                dp = add("D", rd_d(u, sl, nb, half), p_, min(p_ + 6, first_use(u) - 2), [w, dp])
                k += 1
        for q in range(4):
            dmas.append((dps[q], "D", (u, sl, q, dep, tag, ws)))
        dlast[u] = dp
        slot_free[sl] = r1 + 5
        slot_dep[sl] = ([dp], [("df", u, 3, 1)])
    for pi in range(112):
        dmas.append((hpos[pi], "h", pi))
    dmas.sort(key=lambda x: x[0])
    stage_of = lambda ks: 1 if ks < 4 else 2 if ks < 12 else 4 if O.get("no3") else 2 + ((ks - 4) >> 3)
    seen = 0
    chk = pcnt
    for pos, kind, a in dmas:
        if kind == "D":
            u, sl, q, dep, tag, ws = a
            deps = []
            if q == 0:
                deps = [add("S", lambda tag=tag: b.wait(lg=tag), pos - 1, pos + 3, dep)]
            o = add_dma(pre_d(u, sl, q), lambda u=u, q=q: dma_d(u, q), pos, pos + 3, deps)
            if q & 1:
                ws[q >> 1].deps.append(o)
        else:
            pi = a
            ks, jl = frags[2 * pi]
            ks1 = frags[2 * pi + 1][0]
            g, i = pi >> 3, pi & 7
            deps = [bar[27] if g == 0 else b2[max(g - 3, -1)]]
            if stage_of(ks1) > seen:
                seen = stage_of(ks1)
                chk = poll(f"f{seen}", sF, vFP, f"s{sFC}", seen, max(at_time(T[pos] - O.get("pf%d" % seen, pf)), chk.pos + 2), pos - 1, [chk])
                chk.deps.append(flagop[seen])
                assert flagop[seen].pos < chk.pos
                if O.get("verbose"):
                    print("poll", seen, "check at", pos - 1 - NM, "own flag at", flagop[seen].pos - NM)
            deps.append(chk)
            g_ = m0_ops(sM0H, HB[g % 3] + (i >> 1) * 4096) + [[f"s_mov_b32 s{sA}, {ks * 8192 + jl * 1024 - (i & 1) * 2048}"]]
            if O.get("dx"):
                g_[-1] = [f"s_add_u32 s{sA}, s{sRT + (i & 1)}, {(ks & ~3) * 8192 + jl * 1024 + (2048 if i & 1 == 0 else 0)}"]
            txt = f"buffer_load_dwordx4 v{vHD if ks1 == ks else vHD2}, {R('s', sHL)}, s{sA} offen offset:{(i & 1) * 2048} sc1 lds"
            o = add_dma(g_, lambda txt=txt, pi=pi: b.vm(txt, ("h", pi)) if pi < O.get("noh", 999) else b.vm_tag.__setitem__(("h", pi), 0), pos, pos + 3, deps)
            if i == 7:
                b2w[g - 1].deps.append(o)
                assert pos + 3 < beta2(g - 1), (pi, pos, beta2(g - 1))

    NQ = N2 + 32 * (28 - KL)
    eend = lambda jl: NQ + 64 * (JL.index(jl) + 1)
    add("X", [f"s_add_u32 s{sHS}, s{sF}, {XOFF}", f"s_addc_u32 s{sHS + 1}, s{sF + 1}, 0", f"s_mov_b32 s{sHS + 2}, {1024 * 8192}"],
        NQ, None, [last_store[4]])
    valu[NQ + 8].append(f"v_add_u32 v{vHL}, 4096, v{vL16}")
    add("S", [f"s_mov_b32 s{sB_}, 32768"], NQ + 10)
    if O.get("tr"):
        tset = ["v_and_b32 v26, 15, v0", "v_lshrrev_b32 v27, 5, v0", "v_and_b32 v28, 7, v0", "v_xor_b32 v27, v27, v28",
                "v_lshlrev_b32 v27, 4, v27", "v_lshl_add_u32 v27, v26, 7, v27", "v_bfe_u32 v26, v0, 4, 1", "v_lshl_add_u32 v27, v26, 3, v27",
                f"v_add_u32 v22, s{sM0X}, v27", "v_xor_b32 v23, 32, v22", "v_xor_b32 v24, 64, v22", "v_xor_b32 v25, 96, v22",
                "v_lshrrev_b32 v26, 3, v0", "v_xor_b32 v27, v26, v28", "v_lshlrev_b32 v27, 4, v27", "v_lshl_add_u32 v27, v26, 7, v27",
                f"v_add_u32 v29, s{sM0X}, v27", "v_lshlrev_b32 v26, 11, v26", f"v_lshl_add_u32 v{vOUT}, v28, 4, v26"]
        for n_, x in enumerate(tset):
            valu[NQ + 16 + n_].append(x)
    if O.get("full") or O.get("tr"):
        add("S", [f"s_movk_i32 s{sXQ}, 16384"], NQ + 12)
        add("S", [f"s_mov_b32 s{sXQ + 1}, 49152"], NQ + 14)

    zone = lambda jl: 32 if jl & 1 else 48

    def lds_swap(jl):
        off = (jl >> 2) * 8192 + (jl & 1) * 4096
        wp = add("S", lambda: b.wait(lg=[("df", u, 3, 1) for u in range(28)]), eend(jl) + 4, None, list(dlast.values()))
        for k in range(16):
            pos = eend(jl) + 6 + (O.get("wsp", 8) * k) // 4
            txt = f"ds_write_b32 v{vPW}, a{acc2(jl, 0) + k} offset:{off + k * 256}"
            wp = add("D", lambda txt=txt, k=k: b.lg(txt, ("pw", jl, k >> 2)), pos, pos + 3, [wp])
        g = min(g for g in b2 if beta2(g) > pos + 6)
        b2w[g].deps.append(wp)
        b2lg[g].append(("pw", jl, 3))
        rp = b2[g]
        for k in range(8):
            pos = beta2(g) + 3 + (3 * k) // 2
            txt = f"ds_read2st64_b32 {R('v', zone(jl) + 2 * k, 2)}, v{vPR} offset0:{off // 256 + 2 * k} offset1:{off // 256 + 2 * k + 1}"
            rp = add("D", lambda txt=txt, k=k: b.lg(txt, ("pr", jl, k >> 1)), pos, pos + 4, [rp])
        return rp
    xldl = {}
    for e_ in range(2):
        ra = lds_swap(e_)
        p0 = eend(2 + e_) + 4
        assert ra.pos + 4 < p0
        add("S", lambda e_=e_: b.wait(lg=[("pr", e_, 3)]), p0 - 1, p0, [ra])
        sp_ = None
        for k in range(4):
            pos = p0 + 2 * k
            a, s_ = acc2(2 + e_, k), zone(e_) + 4 * k
            for x in range(4):
                valu[pos + (x >> 1)].append(f"v_add_f32 v{a + x}, v{a + x}, v{s_ + x}")
            ps = p0 + 2 + O.get("ssp%d" % e_, (16, 8)[e_]) * k
            txt = f"buffer_store_dwordx4 {R('v', a)}, v{vHL if e_ else vL16}, {R('s', sHS)}, s{sXO} offen offset:{k * 1024} {O.get('xst', 'sc1')}"
            if O.get("xhalf") and k & 1 == 0:
                continue
            sp_ = add("V", lambda txt=txt, e_=e_: b.vm(txt, ("H", 5 + e_)), ps, ps + 2, [sp_])
        last_store[5 + e_] = sp_
        if O.get("x1") and e_ == 0:
            continue
        xf = sp_.pos + O.get("xfd%d" % e_, (64, 56)[e_])
        flag(5 + e_, xf, sXFO, 1 + e_)
        xc = min(xf + O.get("xpd%d" % e_, (140, 110)[e_]), NEND - 8)
        chk = poll(f"fx{e_}", sF, None, f"s{sXFI}", 1 + e_, max(xc - O.get("xpf%d" % e_, 50), chk.pos + 2), xc, [chk])
        chk.deps.append(flagop[5 + e_])
        assert flagop[5 + e_].pos < chk.pos
        lp = chk
        if O.get("x1"):
            for k in range(4):
                txt = f"buffer_load_dwordx4 {R('v', acc2(2, k))}, v{vL16}, {R('s', sHS)}, s{sXI} offen offset:{k * 1024} sc1"
                lp = add("V", lambda txt=txt, k=k: b.vm(txt, ("xr", 0, k)), xc + 1 + k, xc + 3 + k, [lp])
            xldl[0] = lp
            xc += 4
        for k in range(4):
            txt = f"buffer_load_dwordx4 {R('v', acc2(2 + e_, k))}, v{vHL if e_ else vL16}, {R('s', sHS)}, s{sXI} offen offset:{k * 1024} sc1"
            if O.get("xhalf") and k & 1 == 0:
                continue
            lp = add("V", lambda txt=txt, k=k, e_=e_: b.vm(txt, ("xr", e_, k)), xc + 1 + k, xc + 3 + k, [lp])
        xldl[e_] = lp
        if O.get("verbose"):
            print("exchange", e_, "adds", p0, "flag", xf, "check", xc, "end", NEND)
    rc = [lds_swap(4), lds_swap(5)]

    def fin(e_, k2, pk, pre=False):
        ins = []
        for k in (k2, k2 + 1):
            a = acc2(6 + e_, k)
            for s_ in (zone(e_) + 4 * k, acc2(2 + e_, k))[:1 if pre else 2]:
                if pk:
                    ins += [f"v_pk_add_f32 {R('v', a + x, 2)}, {R('v', a + x, 2)}, {R('v', s_ + x, 2)}" for x in (0, 2)]
                else:
                    ins += [f"v_add_f32 v{a + x}, v{a + x}, v{s_ + x}" for x in range(4)]
        a = acc2(6 + e_, k2)
        ins += [f"v_cvt_pk_bf16_f32 v{a + x}, v{a + 2 * x}, v{a + 2 * x + 1}" for x in range(4)]
        ins += ["s_nop 1", f"v_permlane16_swap_b32 v{a}, v{a + 2}", f"v_permlane16_swap_b32 v{a + 1}, v{a + 3}"]
        so = f"s{sB_}" if e_ else "0"
        st = f"buffer_store_dwordx4 {R('v', a)}, v{vOUT}, {R('s', sO)}, {so} offen offset:{(k2 >> 1) * 64} {O.get('ofl%d' % e_, O.get('ofl', 'sc1'))}".rstrip()
        return ins, st
    def fin_full(e_, pk):
        ins = fin(e_, 0, pk)[0] + fin(e_, 2, pk)[0]
        p_, q_ = acc2(6 + e_, 0), acc2(6 + e_, 2)
        ins += [f"v_mov_b32 v{p_ + 4 + x}, v{p_ + x}" for x in range(4)]
        ins += [f"v_mov_b32_dpp v{p_ + x}, v{q_ + x} row_ror:8 row_mask:0xf bank_mask:0xc" for x in range(4)]
        ins += [f"v_mov_b32_dpp v{q_ + x}, v{p_ + 4 + x} row_ror:8 row_mask:0xf bank_mask:0x3" for x in range(4)]
        so = (("0", f"s{sXQ}"), (f"s{sB_}", f"s{sXQ + 1}"))[e_]
        return ins, [f"buffer_store_dwordx4 {R('v', r_)}, v{vOUT}, {R('s', sO)}, {s_} offen sc1" for r_, s_ in zip((p_, q_), so)]
    def fin_tr(e_, pk, pre=False):
        blocks = []
        for k in range(4):
            a = acc2(6 + e_, k)
            ins = []
            for s_ in (zone(e_) + 4 * k, acc2(2 + e_, k))[:1 if pre else 2]:
                if pk and not (pre and k < 2):
                    ins += [f"v_pk_add_f32 {R('v', a + x, 2)}, {R('v', a + x, 2)}, {R('v', s_ + x, 2)}" for x in (0, 2)]
                else:
                    ins += [f"v_add_f32 v{a + x}, v{a + x}, v{s_ + x}" for x in range(4)]
            ins += [f"v_cvt_pk_bf16_f32 v{a + x}, v{a + 2 * x}, v{a + 2 * x + 1}" for x in range(2)]
            blocks.append((ins, f"ds_write_b64 v{22 + k}, {R('v', a, 2)} offset:{e_ * 4096}"))
        z = zone(e_)
        rds = [f"ds_read_b128 {R('v', z + 4 * x)}, v29 offset:{e_ * 4096 + x * 1024}" for x in range(2)]
        so = (("0", f"s{sXQ}"), (f"s{sB_}", f"s{sXQ + 1}"))[e_]
        sts = [f"buffer_store_dwordx4 {R('v', z + 4 * x)}, v{vOUT}, {R('s', sO)}, {so[x]} offen sc1" for x in range(2)]
        return blocks, rds, sts
    p0 = eend(6) + 5 if not O.get("x1") else max(eend(6) + 5, min(xc + O["x1"], NEND - 26))
    add("S", lambda: b.wait(lg=[("pr", 4, 3)], vm=[("xr", 0, 3)]), p0 - 1, p0, [rc[0], xldl[0]])
    if O.get("full"):
        p0 = min(p0, NEND - 34)
        ops[-1].pos, ops[-1].dead = p0 - 1, p0
        ins, sts = fin_full(0, False)
        for x in ins:
            valu[p0].append(x)
            if len(valu[p0]) >= 2 and not x.startswith("s_nop"):
                p0 += 1
        o = add("V", lambda: b.vm(sts[0]), p0 + 1, p0 + 2)
        add("V", lambda: b.vm(sts[1]), p0 + 2, p0 + 3, [o])
    if O.get("tr"):
        p0 = min(p0, NEND - 40)
        ops[-1].pos, ops[-1].dead = p0 - 1, p0
        blocks, rds, sts = fin_tr(0, False)
        o = None
        for k, (ins, w_) in enumerate(blocks):
            for n_, x in enumerate(ins):
                valu[p0 + n_ // 2].append(x)
            p0 += 5
            o = add("D", lambda w_=w_: b.lg(w_, "tw"), p0, p0 + 1, [o])
        o = add("S", lambda: b.wait(lg=["tw"]), p0 + 3, p0 + 4, [o])
        for x in range(2):
            o = add("D", lambda x=x: b.lg(rds[x], ("trd", x)), p0 + 4 + x, p0 + 6 + x, [o])
        for x in range(2):
            o = add("S", lambda x=x: b.wait(lg=[("trd", x)]), p0 + 10 + 2 * x, p0 + 11 + 2 * x, [o])
            o = add("V", lambda x=x: b.vm(sts[x]), p0 + 11 + 2 * x, p0 + 12 + 2 * x, [o])
        if O["tr"] == 2:
            p1 = NEND - 17
            assert p0 + 14 <= p1
            o = add("S", lambda: b.wait(lg=[("pr", 5, 3)], vm=[("xr", 1, 3)]), p1 - 1, p1, [rc[1], xldl[1], o])
            for x in range(16):
                valu[p1 + x // 2].append(f"v_add_f32 v{zone(1) + x}, v{zone(1) + x}, v{acc2(3, 0) + x}")
            for k, (ins, w_) in enumerate(fin_tr(1, True, True)[0][:2]):
                for n_, x in enumerate(ins):
                    valu[NEND - 8 + 4 * k + n_ // 2].append(x)
                o = add("D", lambda w_=w_: b.lg(w_, "tw"), NEND - 5 + 4 * k, NEND - 4 + 4 * k, [o])
    for k2 in (0, 2) if not (O.get("full") or O.get("tr")) else ():
        ins, st = fin(0, k2, False)
        for x in ins[:-3]:
            valu[p0].append(x)
            if len(valu[p0]) >= 2:
                p0 += 1
        valu[p0].extend(ins[-3:])
        add("V", lambda st=st: b.vm(st), p0 + 1, p0 + 2)
        p0 += 1
    if O.get("pre"):
        p1 = max(p0 + 1, NEND - 15)
        assert p1 + 11 <= NEND - 1, (p0, NEND)
        add("S", lambda: b.wait(lg=[("pr", 5, 3)], vm=[("xr", 1, 3)]), p1 - 1, p1, [rc[1], xldl[1]])
        for x in range(16):
            valu[p1 + x // 2].append(f"v_add_f32 v{zone(1) + x}, v{zone(1) + x}, v{acc2(3, 0) + x}")
        ins, st_last = fin(1, 0, False, True)
        for n_, x in enumerate(ins):
            valu[NEND - 4 + min(n_ // 4, 3)].append(x)

    b.wait(vm=[("W", 0, 3 if nb2 else NWQ - 1)])
    e("s_barrier")
    stamp()
    for f in pro[:4]:
        f()
    for jm in range(4):
        b.wait(vm=[("X", 0, 2 * jm + 1)])
        rd_x(0, jm)()
        if not nb2:
            rd_x(1, jm)()
    for f in pro[4:]:
        f()
    ops.sort(key=lambda o: (o.pos, o.seq))
    head = 0
    live = []

    def run(o, n):
        for d in o.deps:
            if not d.done:
                run(d, n)
        k = len(b.out)
        o.fn()
        o.done = True
        o.at = n
        if o.pos > n and o in ops:
            assert o.kind == "S" or O.get("lax"), ("forced early", o.kind, o.pos, n, b.out[-1])
        return sum(1 for x in b.out[k:] if not x.endswith(":"))

    over = two = 0
    notes = {112 * s_: f"GEMM1, K stage {s_} of this workgroup's order (64 deep)" for s_ in range(14)}
    notes.update({NM + 32 * k: f"GEMM1, last two stages of column block {k}; silu(gate) * up of the finished blocks in between" for k in range(7)})
    notes.update({NT + 128 * k: f"GEMM2, k-steps {4 * k}..{4 * k + 3} of all eight row blocks" for k in range(3)})
    notes.update({NQ + 64 * k: f"GEMM2, k-steps 12..27 of row block {jl}" for k, jl in enumerate(JL)})
    for n, (txt, lgt, vmt) in enumerate(slots):
        if n in notes:
            e("; ---- " + notes[n])
        if n in (NM, NT) or n in O.get("spos", ()):
            stamp()
        if txt is not None:
            assert b.issued(vmt, lgt), (n, txt)
            b.wait(vm=vmt, lg=lgt)
            e(txt)
            if n in O.get("trace", ()):
                r_ = TRC[O["trace"].index(n)]
                e(f"{'s_memrealtime' if O.get('rt') else 's_memtime'} s[{r_}:{r_ + 1}]")
        while head < len(ops) and ops[head].pos <= n:
            live.append(ops[head])
            head += 1
        live = [o for o in live if not o.done]
        live.sort(key=lambda o: (o.dead, o.seq))
        ready = lambda o: not o.done and all(d.done and (d.at < n or not d.setup or o.kind != "V") for d in o.deps)
        nxt = slots[n + 1] if n + 1 < len(slots) else (None, [], [])
        va = valu.pop(n, [])
        budget = 2 if txt is not None else 6
        if txt is not None and len(va) == 1 and cost(va[0]) == 1:
            budget = 1
        used = 0
        nmem = 0
        maxmem = O.get("maxmem", 1) if txt is not None and not NM + 24 <= n < EE else 9
        if nxt[0] is not None and b.issued(nxt[2], nxt[1]) and b.needs(nxt[2], nxt[1]):
            b.wait(vm=nxt[2], lg=nxt[1])
        else:
            while True:
                c = [o for o in live if o.kind == "S" and ready(o)]
                if not c:
                    break
                k = run(c[0], n)
                if k:
                    used += k - 1
                    break
        while True:
            c = [o for o in live if ready(o)]
            must = [o for o in live if not o.done and o.dead <= n + 1]
            if must:
                nmem += must[0].kind in "DV"
                used += run(must[0], n)
                continue
            if nmem >= maxmem:
                c = [o for o in c if o.kind not in "DV"]
            if used >= budget or not c:
                break
            mem = [o for o in c if o.kind in "DV"]
            if va and not mem:
                break
            nmem += bool(mem)
            used += run((mem or c)[0], n)
        two += nmem > 1 and n < NM
        over += max(0, used - budget) if n < NM else 0
        for x in va:
            e(x)
    for o in ops:
        if not o.done:
            run(o, NEND)
    assert not valu, list(valu)
    if O.get("verbose"):
        print("over budget in main:", over, "two mem:", two)
    stamp()

    b.wait(lg=[("pr", 5, 3)])
    if O.get("pre"):
        b.vm(st_last)
    e("s_nop 1" if O.get("pre") else "s_nop 0" if O.get("tr") else "s_nop 4")
    if O.get("full"):
        b.wait(vm=[("xr", 1, 3)])
        ins, sts = fin_full(1, True)
        for x in ins:
            e(x)
        for x in sts:
            b.vm(x)
    if O.get("tr"):
        blocks, rds1, sts1 = fin_tr(1, True, O["tr"] == 2)
        for k, (ins, w_) in enumerate(blocks):
            if O["tr"] == 2 and k < 2:
                continue
            if O["tr"] == 2 and k == 3:
                e("s_nop 1")
            b.wait(vm=[("xr", 1, k)])
            for x in ins:
                e(x)
            b.lg(w_, "tw")
        b.wait(lg=["tw"])
        for x in range(2):
            b.lg(rds1[x], ("trd", x))
        for x in range(2):
            b.wait(lg=[("trd", x)])
            b.vm(sts1[x])
    for k2 in () if O.get("full") or O.get("tr") else (2,) if O.get("pre") else (0, 2):
        b.wait(vm=[("xr", 1, k2 + 1)])
        ins, st = fin(1, k2, True, O.get("pre"))
        for x in ins:
            e(x)
        b.vm(st)
    if stamps:
        stamp()
        e("s_waitcnt vmcnt(0)")
        stamp(True)
        e("s_memrealtime s[98:99]")
        e("s_waitcnt lgkmcnt(0)")
        if "probe" in O:
            k = O["probe"]
            if O.get("probewg", 100) >= 0:
                e(f"s_cmp_lg_u32 s2, {O.get('probewg', 100)}")
                e("s_cbranch_scc1 L_end")
            if k == -1:
                e(f"s_mov_b32 s{sA}, 0")
            elif k == -2:
                e(f"s_sub_u32 s{sA}, s98, s100")
                e(f"s_mul_i32 s{sA}, s{sA}, 20")
            else:
                e(f"s_sub_u32 s{sA}, s{sST + k + 1}, s{sST + k}")
            e(f"s_min_u32 s{sA}, s{sA}, 100000")
            e(f"s_add_u32 s{sA}, s{sA}, 10000")
            e("L_probe:")
            e("s_memrealtime s[98:99]")
            e("s_waitcnt lgkmcnt(0)")
            e("s_sub_u32 s98, s98, s100")
            e(f"s_cmp_lt_u32 s98, s{sA}")
            e("s_cbranch_scc1 L_probe")
            e("s_endpgm")
        e(f"s_mov_b32 s{sF + 2}, 0x100000")
        e(f"s_lshl2_add_u32 s{sA}, s2, s{sWV}")
        e(f"s_lshl_b32 s{sA}, s{sA}, 7")
        e(f"s_add_u32 s{sA}, s{sA}, {SOFF}")
        vals = [sST + i + 2 * (sST + i >= sRT) for i in range(nst[0])] + [100, 98] + list(TRC[:len(O.get('trace', ()))])
        for i, r in enumerate(vals):
            e(f"v_mov_b32 v2, s{r}")
            e(f"buffer_store_dword v2, off, {R('s', sF)}, s{sA} offset:{4 * i}")
    e("s_endpgm")
    if "@SLOW@" in b.out:
        i = b.out.index("@SLOW@")
        b.out[i:i + 1] = slow
    else:
        for x in slow:
            e(x)
    e("L_end:")
    e("s_endpgm")
    if O.get("pads", 1):
        add_pads(b.out)
    return b.out, nst[0]


def isize(x):
    if x.endswith(":") or x.startswith((".", ";")):
        return 0
    op, _, rest = x.partition(" ")
    if op.startswith(("v_mfma", "ds_", "buffer_", "global_", "v_pk_", "s_load", "s_mem")):
        return 8
    if op in ("v_cvt_pk_bf16_f32", "v_lshl_add_u32", "v_bfe_u32", "v_mad_u32_u24", "v_mad_i32_i24", "v_mul_hi_u32", "v_lshl_add_u64", "v_mov_b32_dpp"):
        return 8
    if op.startswith(("s_waitcnt", "s_barrier", "s_nop", "s_branch", "s_cbranch", "s_endpgm", "s_movk", "s_setprio", "s_getpc", "s_getreg")):
        return 4
    for a in rest.split(","):
        a = a.strip()
        if a.startswith("L_"):
            return 8
        try:
            v = int(a, 0)
        except ValueError:
            continue
        if not -16 <= v <= 64:
            return 8
    return 4


def add_pads(out):
    i = out.index("L_main:") + 1
    addr, k = 0, 0
    at = []
    while out[i] != "L_end:":
        page = k * 4096
        prev = out[i - 1]
        nxt = addr + isize(out[i])
        shadow = prev.startswith("v_mfma") and not out[i].startswith("s_")
        glued = out[i].startswith(("s_addc", "s_cbranch", "v_permlane")) or out[i].endswith(":") or " exec," in prev or " exec," in out[i]
        if addr >= page and not glued and (shadow or k == 0 or nxt + 12 > page + 60):
            assert addr + 4 <= page + 64, (k, addr)
            out[i:i] = [f"L_pad{k}:", "s_nop 0"]
            at.append(i + 1)
            addr += 4
            i += 2
            k += 1
            continue
        addr = nxt
        i += 1
    assert k >= 4
    for j, p in enumerate(at):
        out[p] = f"s_cbranch_vccnz {'L_pad%d' % (j + 4) if j + 4 < k else 'L_warm'}"


HEADER = """; Fused SwiGLU FFN: out = (silu(x @ w_gate) * (x @ w_up)) @ w_down in one launch of 256 workgroups (one per CU).
; Kernarg layout (56 bytes, ptrs only, base s[0:1]):
; The instruction stream is written by a scheduling script (one MFMA per slot, everything else placed around them).
; @launch grid=(256,1,1) block=(256,1,1) lds=163840
.amdgcn_target "amdgcn-amd-amdhsa--gfx950"
.text
.globl {k}
.p2align 8
.type {k},@function
{k}:
"""
FOOTER = """.section .rodata,"a"
.p2align 6
.amdhsa_kernel {k}
  .amdhsa_next_free_vgpr 512
  .amdhsa_next_free_sgpr 102
  .amdhsa_accum_offset 256
  .amdhsa_group_segment_fixed_size 0
  .amdhsa_kernarg_size 56
  .amdhsa_user_sgpr_count 2
  .amdhsa_user_sgpr_kernarg_segment_ptr 1
  .amdhsa_system_sgpr_workgroup_id_x 1
  .amdhsa_float_denorm_mode_32 3
.end_amdhsa_kernel
"""


def write(path, **kw):
    body, n = gen(**kw)
    with open(path, "w") as f:
        f.write(HEADER.format(k=KNAME))
        f.write("\n".join(x if x.endswith(":") and not x.startswith(";") else "    " + " ".join(x.split()) for x in body) + "\n")
        f.write(FOOTER.format(k=KNAME))
    return n


if __name__ == "__main__":
    write(sys.argv[1] if len(sys.argv) > 1 else "standalone__swiglu_ffn__prompt.s")
```

```python
import sys
from collections import defaultdict

KNAME = "standalone__swiglu_ffn__prompt_kernel"
HOFF = 0x100000
FOFF = 0x0
XOFF = 0x1000000
SOFF = 0x80000


class B:
    def __init__(self):
        self.out = []
        self.vm_n = 0
        self.vm_tag = {}
        self.vm_done = 0
        self.lg_n = 0
        self.lg_tag = {}
        self.lg_done = 0

    def e(self, s):
        self.out.append(s)

    def vm(self, s, tag=None):
        if s.endswith(" lds") and " m0," in self.out[-1]:
            self.e("s_nop 0")
        self.e(s)
        self.vm_n += 1
        if tag is not None:
            self.vm_tag[tag] = self.vm_n

    def lg(self, s, tag=None):
        self.e(s)
        self.lg_n += 1
        if tag is not None:
            self.lg_tag[tag] = self.lg_n

    def issued(self, vm=(), lg=()):
        return all(t in self.vm_tag for t in vm) and all(t in self.lg_tag for t in lg)

    def needs(self, vm=(), lg=()):
        return (max([self.vm_tag[t] for t in vm], default=0) > self.vm_done or
                max([self.lg_tag[t] for t in lg], default=0) > self.lg_done)

    def wait(self, vm=(), lg=()):
        parts = []
        need = max([self.vm_tag[t] for t in vm], default=0)
        if need > self.vm_done:
            n = self.vm_n - need
            parts.append(f"vmcnt({min(n, 63)})")
            self.vm_done = need if n <= 63 else self.vm_n - 63
        need = max([self.lg_tag[t] for t in lg], default=0)
        if need > self.lg_done:
            n = self.lg_n - need
            parts.append(f"lgkmcnt({min(n, 15)})")
            self.lg_done = need if n <= 15 else self.lg_n - 15
        if parts:
            self.e("s_waitcnt " + " ".join(parts))

    def wait_all(self, vm=False, lg=False):
        parts = []
        if vm and self.vm_done < self.vm_n:
            parts.append("vmcnt(0)")
            self.vm_done = self.vm_n
        if lg and self.lg_done < self.lg_n:
            parts.append("lgkmcnt(0)")
            self.lg_done = self.lg_n
        if parts:
            self.e("s_waitcnt " + " ".join(parts))


class Op:
    __slots__ = ("kind", "fn", "pos", "dead", "deps", "done", "seq", "at", "setup")

    def __init__(self, kind, fn, pos, dead, deps, seq):
        self.kind, self.fn, self.pos, self.dead, self.deps, self.seq = kind, fn, pos, dead, deps, seq
        self.done = False
        self.at = None
        self.setup = False


def R(p, a, n=4):
    return f"{p}[{a}:{a + n - 1}]"


sX, sW, sD, sHS, sHL, sO, sF, sG = 8, 12, 16, 20, 24, 28, 32, 36
sWV = 40
sT0 = 41
sXQ = 48
sM0X, sM0W, sTI = 56, 57, 58
sHA, sHB, sHLA, sHLB = 59, 60, 61, 62
sFP, sFC, sCP, sNL2E = 63, 64, 65, 66
sSPIN = 67
sA, sB_ = 68, 69
sM0H, sXO, sXI, sXFO, sXFI = 0, 1, 41, 42, 43
sX0 = 6
sPM, sWO, sXO_ = 70, 72, 73
sTS = 74
sGR = 77
sRT = 92
sK = 80
sST = 78
vXD, vXR, vWD, vWR, vDD, vDR, vL16, vHL, vFP, vFV, vTMP, vWR2, vOUT = 1, 3, 5, 12, 13, 14, 18, 19, 20, 21, 22, 30, 31
ACC = 32
aXF, aWF, aDF = 0, 64, 88
RW = 6
RH = 8
TRC = (80, 82, 84, 86, 88, 90, 94, 96)
TDPOS = (300, 700, 760, 1150)
WST = 64 * 7168


def acc1(b, gu, jm):
    return ACC + 32 * b + 16 * gu + 4 * jm


def acc2(jl, nb):
    return (0, 16, 192, 208, 32, 48, 224, 240)[jl] + 4 * nb


def acc2f(jl):
    return "v" if jl & 2 else "a"


BEST = {'h0': 170, 'pf1': 700, 'g2d': 400, 'pf2': 900, 'xfd1': 50, 'wsp': 8, 'xpd1': 130, 'sg2': 250, 'sk': 150, 'dprio': 120,
        'fd4': 1000, 'sg1': 0, 'gw': 1.0, 'sg3': 250, 'pf4': 900, 'ssp0': 8, 'vgd': 165, 'dper': 138, 'nb2': 4, 'ssp1': 4, 'dlat': 80,
        'sg4': 150, 'xpf1': 30, 'pause': 30, 'fd3': 1200, 'lat': 600, 'pf3': 600, 'fd1': 850, 'vg': 70, 'npro': 5, 'vg2': 60,
        'vg1': 90, 'beta2i': 13, 'map2': 3, 'fd2': 1000, 'gm': 8, 'xpd0': 140}
BEST.update({'nb2': 2, 'e6': 44, 'sg4': 400, 'vg2': 20, 'perm': 'split4', 'chk': 1, 'miss': (), 'gh': 5.8, 'dx': 2, 'er0': 7, 'er': 4.6, 'er2': 3.5, 'fast': 0, 'cpos': (), 'rsel': 2, 'no3': 1, 'sg4': 250, 'pf4': 700, 'x1': 0, 'tr': 2})
BEST.update({'fd2': 1200, 'pf1': 900, 'vg': 85, 'tt': 32, 'wsp': 6, 'xpd1': 110, 'pf4': 500, 'er': 4.4})
BEST.update({'pk': 1, 'ga': 8, 'vgd': 150, 'g2d': 200, 'pf4': 700, 'fd2': 850, 'sg2': 150, 'nt2': 12, 'beta2i': 11, 'fd4': 1400, 'h0': 160})


def stage_orders(kind):
    def lead(r, n, d, start=1):
        o = list(range(16))
        for s in range(start, 16):
            if s % n == r:
                o.remove(s)
                o.insert(max(s - d, 0), s)
        return o
    if kind == "none":
        return [list(range(16))]
    if kind == "rot4":
        return [[(s & ~3) + ((s + r) & 3) for s in range(16)] for r in range(4)]
    if kind == "rot2":
        return [[(s & ~1) + ((s + r) & 1) for s in range(16)] for r in range(2)]
    if kind == "lead1":
        return [lead(r, 4, 1) for r in range(4)]
    if kind == "lead2":
        return [lead(r, 4, 2) for r in range(4)]
    if kind == "rot4lead1":
        return [[(s + r) & 3 for s in range(3)] + [x for x in lead(r, 4, 1, 4) if x not in [(s + r) & 3 for s in range(3)]] for r in range(4)]
    if kind == "lead1x":
        return [[(x + 8 * g) & 15 for x in lead(r, 4, 1)] for g in range(2) for r in range(4)]
    if kind == "trail0":
        return [lead(r, 4, 1) for r in range(4)] + [list(range(16))] * 4
    if kind == "trail1":
        return [lead(r, 4, 1) for r in range(4)] + [[15] + list(range(15))] * 4
    if kind == "trail1l":
        return [lead(r, 4, 1) for r in range(4)] + [[15] + [x for x in lead(r, 4, 1) if x != 15] for r in range(4)]
    if kind.startswith("split"):
        n = int(kind[5:])
        a = [[y for y in lead(r, 4, 1) if y < 16 - n] + list(range(16 - n, 16)) for r in range(4)]
        b_ = [[16 - n + y for y in lead(r, 4, 1) if y < n] + list(range(16 - n)) for r in range(4)]
        return a + b_
    if kind.startswith("spl2_"):
        n = int(kind[5:])
        a = [[y for y in lead(r, 4, 2) if y < 16 - n] + list(range(16 - n, 16)) for r in range(4)]
        b_ = [[16 - n + y for y in lead(r, 4, 2) if y < n] + list(range(16 - n)) for r in range(4)]
        return a + b_
    if kind.startswith("spl0_"):
        n = int(kind[5:])
        return [list(range(16))] * 4 + [list(range(16 - n, 16)) + list(range(16 - n))] * 4
    if kind == "rtrail":
        return [[(s & ~3) + ((s + r) & 3) for s in range(16)] for r in range(4)] + [[15] + list(range(15))] * 4
    if kind == "nonex":
        return [[(x + 8 * g) & 15 for x in range(16)] for g in range(2) for r in range(4)]
    if kind == "lead1h":
        return [[(x + 8 * g) & 15 for x in [y for y in lead(r, 4, 1) if y < 8] + list(range(8, 16))] for g in range(2) for r in range(4)]
    if kind == "rot4h":
        return [[(x + 8 * g) & 15 for x in [(s & ~3) + ((s + r) & 3) for s in range(8)] + list(range(8, 16))] for g in range(2) for r in range(4)]
    if kind == "rot4l":
        return [[(x + 8 * g) & 15 for x in [(s & ~3) + ((s + r) & 3) for s in range(8)] + [y for y in lead(r, 4, 1) if y >= 8]] for g in range(2) for r in range(4)]
    if kind == "lead1y":
        return [[x ^ (4 * g) for x in lead(r, 4, 1)] for g in range(2) for r in range(4)]
    if kind == "lead1z":
        return [[x ^ (2 * g) for x in lead(r, 4, 1)] for g in range(2) for r in range(4)]
    if kind == "lead1r":
        return [[15 - x if g else x for x in lead(r, 4, 1)] for g in range(2) for r in range(4)]
    if kind == "lead2x":
        return [[(x + 8 * g) & 15 for x in lead(r, 4, 2)] for g in range(2) for r in range(4)]
    if kind == "lead21x":
        return [[(x + 8 * g) & 15 for x in lead(r & 1, 2, 1)] for g in range(2) for r in range(4)]
    if kind == "rot4x":
        return [[(((s & ~3) + ((s + r) & 3)) + 8 * g) & 15 for s in range(16)] for g in range(2) for r in range(4)]
    if kind == "rot4s":
        a = [[(s & ~3) + ((s + r) & 3) for s in range(16)] for r in range(4)]
        b_ = [[(s + r) & 1 for s in range(2)] + [2 + (s & ~3) + ((s + r) & 3) for s in range(12)] + [14 + ((s + r) & 1) for s in range(2)] for r in range(4)]
        return a + b_


def gen(stamps=False, **O):
    O = dict(BEST, **O)
    b = B()
    e = b.e
    nst = [0]

    def stamp(last=False):
        if stamps and (stamps != 2 or last):
            i = sST + nst[0]
            i += 2 * (i >= sRT)
            assert i < 98
            nst[0] += 1
            b.wait_all(lg=True)
            e("s_memtime s[98:99]")
            e("s_waitcnt lgkmcnt(0)")
            e(f"s_mov_b32 s{i}, s98")

    wrow = O.get("wrow", 0)
    NWQ = 8 if wrow else 7
    SIG = [65536, 131072, 98304 if wrow else 94208]
    sig = lambda s: SIG[s % 3]
    slow = []

    if stamps:
        e("s_memrealtime s[100:101]")
        e(f"s_memtime s[{sST}:{sST + 1}]")
        nst[0] += 1
    e(f"s_load_dwordx8 s[{sK}:{sK + 7}], s[0:1], 0")
    e(f"s_load_dwordx4 s[{sK + 8}:{sK + 11}], s[0:1], 32")
    e(f"s_load_dwordx2 s[{sF}:{sF + 1}], s[0:1], 48")
    e("s_cmp_ge_u32 s2, 256")
    e("s_cbranch_scc1 L_end")
    e("v_lshrrev_b32 v2, 6, v0")
    e("v_and_b32 v0, 63, v0")
    e(f"v_readfirstlane_b32 s{sWV}, v2")
    e("s_and_b32 s41, s2, 1")
    e("s_bfe_u32 s42, s2, 0x20001")
    e("s_bfe_u32 s43, s2, 0x20003")
    e("s_lshr_b32 s44, s2, 5")
    e("s_xor_b32 s45, s41, s42")
    e("s_and_b32 s45, s45, 1")
    e("s_lshl2_add_u32 s45, s45, s43")
    sMT, sJ, sMB, sNB = 45, 46, 47, 3
    e("v_lshrrev_b32 v25, 3, v0")
    e("v_lshrrev_b32 v26, 4, v0")
    e("v_and_b32 v27, 7, v0")
    e("v_xor_b32 v23, v27, v26")
    e("v_lshlrev_b32 v25, 11, v25")
    e(f"v_lshl_add_u32 v{vXD}, v23, 4, v25")
    e(f"v_xor_b32 v{vXD + 1}, 64, v{vXD}")
    perms = stage_orders(O["perm"])
    assert len(perms) == 8
    rsel = O.get("rsel", 0)
    if rsel == 0:
        e(f"s_add_u32 s{sTI}, s43, s44")
    elif rsel == 1:
        e(f"s_lshr_b32 s{sTI}, s44, 2")
        e(f"s_add_u32 s{sTI}, s{sTI}, s43")
        e(f"s_and_b32 s{sA}, s42, 2")
        e(f"s_add_u32 s{sTI}, s{sTI}, s{sA}")
    elif rsel == 2:
        e(f"s_lshr_b32 s{sTI}, s44, 1")
        e(f"s_add_u32 s{sTI}, s{sTI}, s43")
    elif rsel == 3:
        e(f"s_add_u32 s{sTI}, s44, 1")
        e(f"s_lshr_b32 s{sTI}, s{sTI}, 1")
        e(f"s_add_u32 s{sTI}, s{sTI}, s43")
    e(f"s_and_b32 s{sTI}, s{sTI}, 3")
    e(f"s_lshl2_add_u32 s{sTI}, s41, s{sTI}")
    e(f"s_lshl_b32 s{sA}, s{sTI}, 2")
    if "perm3" in O:
        p3 = stage_orders(O["perm3"])
        e(f"s_add_u32 s{sB_}, s44, 1")
        e(f"s_bfe_u32 s{sB_}, s{sB_}, 0x10001")
        e(f"s_cselect_b32 s{sWO}, {sum(pm[0] << (4 * k) for k, pm in enumerate(p3)):#x}, 0")
        e(f"s_cselect_b32 s{sXO_}, 0, {sum(pm[0] << (4 * k) for k, pm in enumerate(perms)):#x}")
        e(f"s_or_b32 s{sWO}, s{sWO}, s{sXO_}")
        e(f"s_lshr_b32 s{sWO}, s{sWO}, s{sA}")
        e(f"s_lshl3_add_u32 s{sTI}, s{sB_}, s{sTI}")
        perms = perms + p3
    else:
        e(f"s_lshr_b32 s{sWO}, {sum(pm[0] << (4 * k) for k, pm in enumerate(perms)):#x}, s{sA}")
    e(f"s_and_b32 s{sWO}, s{sWO}, 15")
    e(f"s_lshl_b32 s{sXO_}, s{sWO}, 7")
    e(f"s_lshl2_add_u32 s{sB_}, s{sMT}, s{sWV}")
    e(f"s_lshl_b32 s{sB_}, s{sB_}, 17")
    e(f"s_mov_b32 s{sX + 2}, {63 * 2048 + 128}")
    e(f"s_mov_b32 s{sX + 3}, 0x20000")
    e(f"s_lshl_b32 s{sM0X}, s{sWV}, 14")
    e(f"s_mov_b32 m0, s{sM0X}")
    for q in range(4):
        e(f"s_mov_b32 s{sXQ + q}, {q * 16384 - (q & 3) * 1024}")
    nib = lambda d, s_: f"s_bfe_u32 s{d}, s{sPM + (s_ >> 3)}, {0x40000 + 4 * (s_ & 7):#x}"

    def w_off(q, base):
        if q:
            e(f"v_add_u32 v22, {64 * 4682}, v22")
        e("v_lshrrev_b32 v23, 16, v22")
        e("v_and_b32 v24, 3, v23")
        e(f"v_mad_u32_u24 v23, v23, s{sHA}, v{base}")
        e(f"v_mad_i32_i24 v{vWD + q}, v24, s{sHB}, v23")

    def w_setup1():
        e(f"v_lshlrev_b32 v{vL16}, 4, v0")
        e("v_mul_u32_u24 v22, 4682, v0")
        e(f"s_movk_i32 s{sHA}, 14112")
        e(f"s_movk_i32 s{sHB}, -7168")
        if wrow:
            e(f"s_movk_i32 s{sHA}, {7168 - 224}")
            for par in range(2):
                if par:
                    e("v_max_u32 v24, 8, v0")
                    e("v_subrev_u32 v24, 8, v24")
                else:
                    e("v_min_u32 v24, 55, v0")
                e("v_mul_u32_u24 v22, 4682, v24")
                e("v_lshrrev_b32 v22, 16, v22")
                e("v_lshlrev_b32 v24, 4, v24")
                e(f"v_mad_u32_u24 v{vWD + par}, v22, s{sHA}, v24")
                if wrow == 2:
                    e(f"v_cmp_{'gt' if par else 'le'}_u32 vcc, {8 if par else 56}, v0")
                    e("v_bfrev_b32 v24, 2")
                    e("s_nop 0")
                    e(f"v_cndmask_b32 v{vWD + par}, v{vWD + par}, v24, vcc")
        else:
            for q in range(4):
                w_off(q, vL16)
        e("s_lshl3_add_u32 s46, s42, s44")
        e(f"s_mul_i32 s{sWO}, s{sWO}, {WST}")
        e(f"s_lshr_b32 s{sA}, s{sWV}, 1")
        e(f"s_mul_i32 s{sA}, s{sA}, {4 * 7168}")
        e(f"s_mul_i32 s{sHLA}, s{sJ}, 224")
        e(f"s_add_u32 s{sA}, s{sA}, s{sHLA}")
        e(f"s_mov_b32 s{sW + 2}, {15 * WST + 60 * 7168}")
        e(f"s_mov_b32 s{sW + 3}, 0x20000")
        e(f"s_mul_i32 s{sM0W}, s{sWV}, {8192 if wrow else 7168}")

    def w_setup2():
        e(f"s_bitcmp1_b32 s{sWV}, 0")
        e(f"s_cselect_b32 s{sW}, s{sK + 4}, s{sK + 2}")
        e(f"s_cselect_b32 s{sW + 1}, s{sK + 5}, s{sK + 3}")
        e(f"s_add_u32 s{sW}, s{sW}, s{sA}")
        e(f"s_addc_u32 s{sW + 1}, s{sW + 1}, 0")

    def code_touch():
        e("; ---- bring this kernel's code into L2 ahead of the instruction fetch (4 lines per wave)")
        e("s_getpc_b64 s[4:5]")
        e("L_pc:")
        e(f"s_lshr_b32 s{sHLB}, s2, 3")
        e(f"s_lshl2_add_u32 s{sHLB}, s{sHLB}, s{sWV}")
        e(f"s_lshl_b32 s{sHLB}, s{sHLB}, 9")
        e(f"v_min_u32 v{vOUT}, 3, v0")
        e(f"v_lshl_add_u32 v{vOUT}, v{vOUT}, 7, s{sHLB}")
        e(f"v_min_u32 v{vOUT}, L_end-L_pc, v{vOUT}")
        b.vm(f"global_load_dword v{vFV}, v{vOUT}, s[4:5]")
    fast = O.get("fast", 1)
    if fast in (0, 2):
        code_touch()
    if fast == 0:
        w_setup1()
    e("s_waitcnt lgkmcnt(0)")
    stamp()

    m0_state = [(sM0X, 0)]

    def m0_ops(sreg, off):
        if m0_state[0] == (sreg, off):
            return []
        m0_state[0] = (sreg, off)
        return [[f"s_add_u32 m0, s{sreg}, {off}" if off else f"s_mov_b32 m0, s{sreg}"]]

    def pre_w(s, q):
        g = m0_ops(sM0W, sig(s) + (q >> 2) * 4096)
        if q == 0 and s:
            g += [[nib(sWO, s)], [f"s_mul_i32 s{sWO}, s{sWO}, {WST}"]]
        if wrow and q:
            g.append([f"s_add_u32 s{sWO}, s{sWO}, {8 * 7168 - 1024 if q != 4 else 8 * 7168 + 3072}"])
        return g

    def dma_w(s, q):
        if O.get("now") and s >= 3:
            b.vm_tag["W", s, q] = 0
            return
        b.vm(f"buffer_load_dwordx4 v{vWD + (q & 1 if wrow else q)}, {R('s', sW)}, s{sWO} offen offset:{(q & 3) * 1024} {O.get('wfl', '')} lds", ("W", s, q))

    def pre_x(s, q):
        g = m0_ops(sM0X, (2 * s + (q >> 2)) % 3 * 4096)
        if q == 0:
            if s:
                g += [[nib(sXO_, s)], [f"s_lshl_b32 s{sXO_}, s{sXO_}, 7"]]
            g.append([f"s_add_u32 s{sX}, s{sX0}, s{sXO_}", f"s_addc_u32 s{sX + 1}, s{sX0 + 1}, 0"])
        return g

    def dma_x(s, q):
        if O.get("nox") and s >= 2:
            b.vm_tag["X", s, q] = 0
            return
        b.vm(f"buffer_load_dwordx4 v{vXD + (q & 1)}, {R('s', sX)}, s{sXQ + q} offen offset:{(q & 3) * 1024} {O.get('xfl', '')} lds", ("X", s, q))

    def now(groups):
        for g in groups:
            for x in g:
                e(x)

    e(f"s_add_u32 s{sX0}, s{sK}, s{sB_}")
    e(f"s_addc_u32 s{sX0 + 1}, s{sK + 1}, 0")
    for q in range(4):
        now(pre_x(0, q))
        dma_x(0, q)
    if fast == 1:
        code_touch()
    if fast:
        w_setup1()
    w_setup2()
    for q in range(4):
        now(pre_w(0, q))
        dma_w(0, q)
    for q in range(4, 8):
        e(f"s_mov_b32 s{sXQ + q}, {q * 16384 - (q & 3) * 1024}")
    nx0 = 8
    for q in range(4, 8):
        now(pre_x(0, q))
        dma_x(0, q)
    for r_, pm in enumerate(perms):
        assert sorted(pm) == list(range(16))
        lo = sum(v << (4 * k) for k, v in enumerate(pm[:8]))
        hi = sum(v << (4 * k) for k, v in enumerate(pm[8:]))
        if r_ == 0:
            e(f"s_mov_b32 s{sPM}, {lo:#x}")
            e(f"s_mov_b32 s{sPM + 1}, {hi:#x}")
        else:
            e(f"s_cmp_eq_u32 s{sTI}, {r_}")
            e(f"s_cselect_b32 s{sPM}, {lo:#x}, s{sPM}")
            e(f"s_cselect_b32 s{sPM + 1}, {hi:#x}, s{sPM + 1}")
    e(f"v_add_u32 v28, 4096, v{vL16}")
    for q in range(4, 4 if wrow else 7):
        w_off(q, 28)
    pro_items = [("W", 0, q) for q in range(4, NWQ)] + [("X", 1, q) for q in range(4)] + [("W", 1, q) for q in range(NWQ)]
    npro = O.get("npro", 3)

    map2 = O.get("map2", 3)
    if map2 == 0:
        e("s_lshl2_add_u32 s47, s42, s43")
        e(f"s_mov_b32 s{sA}, s44")
    elif map2 == 1:
        e(f"s_lshr_b32 s{sA}, s42, 1")
        e(f"s_lshl3_add_u32 s47, s{sA}, s44")
        e(f"s_and_b32 s{sA}, s42, 1")
        e(f"s_lshl2_add_u32 s{sA}, s{sA}, s43")
    elif map2 in (2, 3):
        if map2 == 2:
            e(f"s_and_b32 s{sA}, s2, 3")
            e(f"s_lshl2_add_u32 s47, s{sA}, s43")
            e(f"s_mov_b32 s{sA}, s44")
        else:
            e("s_lshl3_add_u32 s47, s41, s44")
            e(f"s_and_b32 s{sA}, s42, 1")
            e(f"s_lshl2_add_u32 s{sA}, s{sA}, s43")
        e("s_lshr_b32 s41, s42, 1")
        e("s_xor_b32 s41, s41, 1")
    else:
        e("s_xor_b32 s41, s41, 1")
        if map2 == 4:
            e(f"s_and_b32 s{sA}, s42, 1")
            e(f"s_lshl1_add_u32 s{sA}, s41, s{sA}")
            e(f"s_lshl2_add_u32 s47, s{sA}, s43")
            e(f"s_mov_b32 s{sA}, s44")
        else:
            e("s_lshl3_add_u32 s47, s41, s44")
            e(f"s_and_b32 s{sA}, s42, 1")
            e(f"s_lshl2_add_u32 s{sA}, s{sA}, s43")
        e("s_lshr_b32 s41, s42, 1")
    e(f"s_and_b32 s{sB_}, s{sWV}, 1")
    e(f"s_lshl1_add_u32 s3, s{sA}, s{sB_}")
    e(f"s_lshr_b32 s{sA}, s{sWV}, 1")
    e(f"s_lshl1_add_u32 s{sSPIN}, s41, s{sA}")
    e("s_lshr_b32 s42, s46, 3")
    e("s_and_b32 s44, s46, 7")
    e(f"s_lshl_b32 s{sM0H}, s{sA}, 14")
    if O.get("dx"):
        m_ = {1: f"s_and_b32 s{sRT}, s47, 3", 2: f"s_bfe_u32 s{sRT}, s47, 0x20002", 3: f"s_lshr_b32 s{sRT}, s47, 3"}[O["dx"]]
        e(m_)
        for i in range(4):
            e(f"s_xor_b32 s{sTS + i}, s{sRT}, {i}")
            e(f"s_mul_i32 s{sTS + i}, s{sTS + i}, {112 * 2048}")
        e(f"s_xor_b32 s{sHLA}, s{sRT}, s{sB_}")
        e(f"s_and_b32 s{sHLA}, s{sHLA}, 1")
        e(f"s_lshl_b32 s{sHLA}, s{sHLA}, 10")
        e(f"v_add_u32 v29, s{sHLA}, v{vL16}")
        e(f"s_and_b32 s{sRT}, s{sRT}, 2")
        e(f"s_lshl_b32 s{sRT}, s{sRT}, 13")
        e(f"s_xor_b32 s{sRT + 1}, s{sRT}, 16384")
    e(f"s_lshl_b32 s{sB_}, s{sB_}, 10")
    if not O.get("dx"):
        e(f"v_add_u32 v29, s{sB_}, v{vL16}")
    e(f"v_add_u32 v28, s{sM0H}, v{vL16}")
    e(f"s_add_u32 s{sM0H}, s{sM0H}, s{sB_}")
    sWQ = sSPIN
    e("v_lshlrev_b32 v23, 1, v26")
    e("v_xor_b32 v23, v27, v23")
    e(f"v_lshl_add_u32 v{vDD}, v23, 4, v25")
    e("v_and_b32 v22, 15, v0")
    e("v_lshrrev_b32 v24, 1, v22")
    e("v_xor_b32 v24, v24, v26")
    e("v_lshlrev_b32 v24, 4, v24")
    e("v_lshl_add_u32 v24, v22, 7, v24")
    e(f"v_add_u32 v{vXR}, s{sM0X}, v24")
    e(f"v_xor_b32 v{vXR + 1}, 64, v{vXR}")
    e(f"v_lshlrev_b32 v{vFP}, 2, v22")
    e("v_lshrrev_b32 v24, 2, v0")
    e("v_and_b32 v25, 3, v0")
    e("v_mul_u32_u24 v26, 224, v24")
    if wrow:
        e("v_lshrrev_b32 v27, 4, v0")
        e("v_add_u32 v27, 1, v27")
        e("v_lshrrev_b32 v27, 1, v27")
        e("v_lshl_add_u32 v26, v27, 8, v26")
    e("v_lshl_add_u32 v26, v25, 3, v26")
    e(f"v_add_u32 v{vWR}, 65536, v26")
    e(f"v_add_u32 v{vWR2}, 131072, v26")
    e("v_lshlrev_b32 v26, 7, v24")
    e("v_lshl_add_u32 v26, v25, 3, v26")
    e(f"v_add_u32 v26, s{sM0X}, v26")
    e("v_bfe_u32 v27, v0, 3, 2")
    e(f"v_lshl_add_u32 v{vDR}, v27, 5, v26")
    for nb in range(1, 4):
        e(f"v_xor_b32 v{vDR + nb}, {32 * nb}, v{vDR}")
    e("v_lshrrev_b32 v24, 5, v0")
    e("v_and_b32 v25, 31, v0")
    e("v_lshlrev_b32 v25, 4, v25")
    e(f"v_lshl_add_u32 v{vHL}, v24, 10, v25")
    e(f"s_mov_b32 s{sF + 2}, 8192")
    e(f"s_mov_b32 s{sF + 3}, 0x20000")
    e(f"s_lshr_b32 s{sA}, s{sWV}, 1")
    e(f"s_lshl1_add_u32 s{sA}, s{sMT}, s{sA}")
    e(f"s_lshl2_add_u32 s{sB_}, s{sA}, s42")
    e(f"s_lshl_b32 s{sFP}, s{sB_}, 7")
    e(f"s_and_b32 s{sHA}, s{sWV}, 1")
    e(f"s_lshl1_add_u32 s{sHB}, s44, s{sHA}")
    e(f"s_lshl2_add_u32 s{sFP}, s{sHB}, s{sFP}")
    e("s_cmp_eq_u32 s2, 0")
    e("s_cbranch_scc1 L_clear")
    e("L_cleared:")
    slow.append("L_clear:")
    slow.extend(f"v_mov_b32 v{24 + x}, 0" for x in range(4))
    slow.extend([f"s_lshl_b32 s{sA}, s{sWV}, 11",
                 f"buffer_store_dwordx4 v[24:27], v{vL16}, {R('s', sF)}, s{sA} offen sc1",
                 f"buffer_store_dwordx4 v[24:27], v{vL16}, {R('s', sF)}, s{sA} offen offset:1024 sc1",
                 "s_branch L_cleared"])
    if O.get("wt"):
        e(f"s_and_b32 s{sA}, s46, 1")
        e(f"s_and_b32 s{sB_}, s45, 3")
        e(f"s_lshl2_add_u32 s{sB_}, s{sA}, s{sB_}")
        e(f"s_lshl_b32 s{sB_}, s{sB_}, 2")
        e(f"s_lshr_b32 s{sHLA}, s{sWV}, 1")
        e(f"s_add_u32 s{sB_}, s{sB_}, s{sHLA}")
        e(f"s_mul_i32 s{sB_}, s{sB_}, {4 * 7168}")
        e(f"s_mul_i32 s{sA}, s{sA}, 672")
        e(f"s_sub_u32 s{sB_}, s{sB_}, s{sA}")
        e(f"s_add_u32 s{sB_}, s{sB_}, 256")
        e("v_min_u32 v24, 23, v0")
        e("v_mul_u32_u24 v25, 0x5556, v24")
        e("v_lshrrev_b32 v25, 16, v25")
        e(f"v_mul_u32_u24 v26, {7168 - 384}, v25")
        e("v_lshl_add_u32 v26, v24, 7, v26")
        e(f"v_add_u32 v26, s{sB_}, v26")
        e(f"s_add_u32 s{sA}, s46, 1")
        e(f"s_bitcmp1_b32 s{sA}, 1")
        e(f"s_cselect_b32 s{sA}, 0, -1")
        e(f"v_and_b32 v26, s{sA}, v26")
        e(f"s_and_b32 s{sTS + 1}, s{sA}, {2 * WST}")
        e(f"s_mul_i32 s{sTS + 2}, s{sGR}, {(16 - O['wt']) // 2}")
    if O["cpos"]:
        e("s_mov_b32 s46, s4")
        e("s_mov_b32 s45, s5")
    if O.get("touchd", 1):
        e(f"s_lshl2_add_u32 s{sA}, s2, s{sWV}")
        if O.get("tall"):
            e(f"s_mul_i32 s{sA}, s{sA}, {56 * 128}")
        elif O.get("tlite"):
            e(f"s_add_u32 s{sB_}, s44, 1")
            e(f"s_bfe_u32 s{sB_}, s{sB_}, 0x10001")
            e(f"s_mov_b32 s{sHLA}, s{sB_}")
            e(f"s_lshr_b32 s{sB_}, s2, 6")
            e(f"s_and_b32 s{sA}, s{sA}, 127")
            e(f"s_lshl_b32 s{sB_}, s{sB_}, 7")
            e(f"s_add_u32 s{sA}, s{sA}, s{sB_}")
            e(f"s_lshr_b32 s{sB_}, s{sA}, 4")
            e(f"s_mul_i32 s{sB_}, s{sB_}, 28")
            e(f"s_and_b32 s{sA}, s{sA}, 15")
            e(f"s_add_u32 s{sA}, s{sA}, s{sB_}")
            e(f"s_add_u32 s{sA}, s{sA}, 12")
            e(f"s_lshl_b32 s{sA}, s{sA}, 13")
        else:
            e(f"s_lshr_b32 s{sB_}, s{sA}, 5")
            e(f"s_mul_i32 s{sB_}, s{sB_}, 56")
            e(f"s_and_b32 s{sA}, s{sA}, 31")
            e(f"s_add_u32 s{sA}, s{sA}, s{sB_}")
            e(f"s_add_u32 s{sA}, s{sA}, 24")
            e(f"s_lshl_b32 s{sA}, s{sA}, 12")
        TL = (56 if O.get("tall") else 64 if O.get("tlite") else 32) // len(O.get("tdpos", TDPOS))
        e(f"v_min_u32 v22, {TL - 1}, v0")
        if O.get("tlite"):
            e(f"s_cmp_eq_u32 s{sHLA}, 0")
            e(f"s_cselect_b32 s{sA}, s{sA}, 0")
            e(f"s_cselect_b32 s{sTS}, {TL * 128}, 0")
            e(f"s_cselect_b32 s{sB_}, -1, 0")
            e(f"v_and_b32 v22, s{sB_}, v22")
        e(f"v_lshl_add_u32 v22, v22, 7, s{sA}")
        e(f"s_mov_b32 s4, s{sK + 6}")
        e(f"s_mov_b32 s5, s{sK + 7}")
    if O.get("xt"):
        e(f"s_lshl2_add_u32 s{sA}, s2, s{sWV}")
        e(f"s_lshl_b32 s{sA}, s{sA}, 12")
        e(f"v_min_u32 v26, {32 // len(O['xt']) - 1}, v0")
        if len(O["xt"]) == 2:
            e("v_lshrrev_b32 v25, 3, v26")
            e("v_and_b32 v26, 7, v26")
            e("v_lshl_add_u32 v26, v25, 4, v26")
        e(f"v_lshl_add_u32 v26, v26, 7, s{sA}")
        e(f"s_mov_b32 s46, s{sK}")
    e(f"s_mul_i32 s{sA}, s{sWQ}, {896 * 2048}")
    e(f"s_lshl_b32 s{sB_}, s{sNB}, 7")
    e(f"s_add_u32 s{sA}, s{sA}, s{sB_}")
    e(f"s_add_u32 s{sD}, s{sK + 6}, s{sA}")
    e(f"s_addc_u32 s{sD + 1}, s{sK + 7}, 0")
    e(f"s_mov_b32 s{sD + 2}, {895 * 2048 + 128}")
    e(f"s_mov_b32 s{sD + 3}, 0x20000")
    e(f"s_lshr_b32 s{sA}, s{sFP}, 7")
    e(f"s_mul_i32 s{sA}, s{sA}, {28 * 8192}")
    e(f"s_add_u32 s{sA}, s{sA}, {HOFF}")
    e(f"s_add_u32 s{sHS}, s{sF}, s{sA}")
    e(f"s_addc_u32 s{sHS + 1}, s{sF + 1}, 0")
    e(f"s_mov_b32 s{sHS + 2}, {28 * 8192}")
    e(f"s_mov_b32 s{sHS + 3}, 0x20000")
    e(f"s_lshl2_add_u32 s{sA}, s{sMB}, s{sWQ}")
    e(f"s_lshl_b32 s{sFC}, s{sA}, 7")
    e(f"s_mul_i32 s{sA}, s{sA}, {28 * 8192}")
    e(f"s_add_u32 s{sA}, s{sA}, {HOFF - (2048 if O.get('dx') else 0)}")
    e(f"s_add_u32 s{sHL}, s{sF}, s{sA}")
    e(f"s_addc_u32 s{sHL + 1}, s{sF + 1}, 0")
    e(f"s_mov_b32 s{sHL + 2}, {28 * 8192 + 2048}")
    e(f"s_mov_b32 s{sHL + 3}, 0x20000")
    e(f"s_lshl_b32 s{sA}, s{sHA}, 1")
    e(f"s_xor_b32 s{sA}, s{sA}, s42")
    e(f"s_xor_b32 s{sA}, s{sA}, 3")
    e(f"s_xor_b32 s{sB_}, s{sA}, 1")
    e(f"s_lshl_b32 s{sA}, s{sA}, 11")
    e(f"s_lshl_b32 s{sB_}, s{sB_}, 11")
    e(f"s_add_u32 s{sHA}, s44, 4")
    e(f"s_lshl_b32 s{sHA}, s{sHA}, 13")
    e(f"s_add_u32 s{sHB}, s{sHA}, s{sB_}")
    e(f"s_add_u32 s{sHA}, s{sHA}, s{sA}")
    e(f"s_lshr_b32 s{sHLA}, s44, 1")
    e(f"s_lshl_b32 s{sHLA}, s{sHLA}, 13")
    e(f"s_and_b32 s{sHLB}, s44, 1")
    e(f"s_lshl_b32 s{sHLB}, s{sHLB}, 9")
    e(f"s_add_u32 s{sHLA}, s{sHLA}, s{sHLB}")
    e(f"s_add_u32 s{sHLB}, s{sHLA}, s{sB_}")
    e(f"s_add_u32 s{sHLA}, s{sHLA}, s{sA}")
    e(f"s_lshl2_add_u32 s{sA}, s{sMB}, s{sWQ}")
    e(f"s_lshl_b32 s{sA}, s{sA}, 16")
    e(f"s_lshl_b32 s{sB_}, s{sNB}, 7")
    e(f"s_add_u32 s{sA}, s{sA}, s{sB_}")
    e(f"s_add_u32 s{sO}, s{sK + 8}, s{sA}")
    e(f"s_addc_u32 s{sO + 1}, s{sK + 9}, 0")
    e(f"s_mov_b32 s{sO + 2}, {31 * 2048 + 128}")
    e(f"s_mov_b32 s{sO + 3}, 0x20000")
    e(f"s_mov_b32 s{sG}, s{sK + 10}")
    e(f"s_mov_b32 s{sG + 1}, s{sK + 11}")
    e(f"s_mov_b32 s{sG + 2}, 256")
    e(f"s_mov_b32 s{sG + 3}, 0x20000")
    e(f"s_or_b32 s{sCP}, s2, s{sWV}")
    e(f"s_mov_b32 s{sNL2E}, 0xbfb8aa3b")
    if O["cpos"]:
        e("s_mov_b32 s47, s45")
    if O.get("xt"):
        e(f"s_mov_b32 s47, s{sK + 1}")
        if O["xt"][0] < 0:
            b.vm("global_load_dword v25, v26, s[46:47]", "touch")
    e(f"s_lshl2_add_u32 s{sXFO}, s{sNB}, s{sFC}")
    e(f"s_add_u32 s{sXFO}, s{sXFO}, 64")
    e(f"s_xor_b32 s{sXFI}, s{sXFO}, 256")
    e(f"s_lshr_b32 s{sA}, s{sFC}, 3")
    e(f"s_add_u32 s{sA}, s{sA}, s{sNB}")
    e(f"s_lshl_b32 s{sXO}, s{sA}, 13")
    e(f"s_xor_b32 s{sXI}, s{sXO}, {32 << 13}")

    def warm():
        e("; ---- instruction prefetch stops at 4 KiB boundaries: while the first loads are under way every wave follows a short chain")
        e("; ---- of branches (L_padN, taken only while vcc != 0) through the first line of the code pages")
        e("s_mov_b64 vcc, 1")
        for w_ in range(3):
            e(f"s_cmp_eq_u32 s{sWV}, {w_}")
            e(f"s_cbranch_scc1 L_pad{w_}")
        e("s_branch L_pad3")
        e("L_warm:")
        e("s_mov_b64 vcc, 0")
    rest = [("X", 0, q) for q in range(nx0, 8)] + pro_items[:npro]
    wat = min(O.get("wat", 0), len(rest))
    for n_, (k, s_, q) in enumerate(rest + [(None, 0, 0)]):
        if n_ == wat and O.get("pads", 1):
            warm()
        if k:
            now((pre_w if k == "W" else pre_x)(s_, q))
            (dma_w if k == "W" else dma_x)(s_, q)
    if O.get("pads", 1):
        e("s_branch L_main")
        e("@SLOW@")
        e(".p2align 12")
        e("L_main:")

    ops = []

    def add(kind, fn, pos, dead=None, deps=()):
        if isinstance(fn, (list, tuple)):
            g = list(fn)
            fn = lambda g=g: [e(x) for x in g]
        o = Op(kind, fn, pos, pos + 12 if dead is None else dead, [d for d in deps if d is not None], len(ops))
        ops.append(o)
        return o

    slots = []
    valu = defaultdict(list)
    NM = 28 * 56
    NT = NM + 224
    NE = 0
    N2 = NT + NE
    xset = lambda t: t & 3
    WR = (64, 68, 72, 76, 80, 84, 248, 252)
    wreg = lambda F: WR[F % 8]

    def rd_w(F, t, i, half):
        s, p, gu, blk = t >> 1, t & 1, i & 1, i >> 1
        off = sig(s) + (gu + 2 * half) * (8192 if wrow else 7168) + p * (4096 if wrow else 3584) + blk * 32
        v, off = (vWR, off - 65536) if off < 131072 else (vWR2, off - 131072)
        r = wreg(F) + 2 * half
        if O.get("skipw") and half == 0 and 14 <= F < 28 * 14:
            return lambda: b.lg_tag.__setitem__(("wf", F, half), 0)
        return lambda: b.lg(f"ds_read_b64_tr_b16 {R('a', r, 2)}, v{v} offset:{off}", ("wf", F, half))

    def rd_x(t, jm):
        s, p = t >> 1, t & 1
        return lambda: b.lg(f"ds_read_b128 {R('a', aXF + 16 * xset(t) + 4 * jm)}, v{vXR + p} offset:{(2 * s + (jm >> 1)) % 3 * 4096 + (jm & 1) * 2048}", ("xf", t, jm))

    beta = lambda t: 56 * t + O.get("beta", 42)
    nb2 = O.get("nb2", 4)
    groups = []
    for s in range(14):
        if 2 * s < nb2:
            groups += [[(t, i)] for t in (2 * s, 2 * s + 1) for i in range(14)]
        else:
            groups += [[(2 * s, i), (2 * s + 1, i)] for i in range(14)]
    groups += [[(t, gu), (t + 1, gu)] for t in (28, 30) for gu in range(2)]
    groups += [[(28 + tt, i) for tt in range(4)] for i in range(2, 14)]
    frs = [f for g in groups for f in g]
    fuse, luse, adone = {}, {}, {}
    started = set()
    F0 = nchain = 0
    for gi, g in enumerate(groups):
        for jm in (range(3, -1, -1) if gi & 1 else range(4)):
            for k in (range(len(g) - 1, -1, -1) if nchain & 1 else range(len(g))):
                t, i = g[k]
                F = F0 + k
                fuse.setdefault(F, len(slots))
                luse[F] = len(slots)
                d = R("v", acc1(i >> 1, i & 1, jm))
                c = d if (i, jm) in started else "0"
                started.add((i, jm))
                adone[i, jm] = len(slots)
                slots.append((f"v_mfma_f32_16x16x32_bf16 {d}, {R('a', wreg(F))}, {R('a', aXF + 16 * xset(t) + 4 * jm)}, {c}",
                              [("wf", F, 1), ("xf", t, jm)], []))
            nchain += 1
        F0 += len(g)
    pro = []
    bar = {}
    prev = None
    barw = {}
    LA = O.get("la", 20)
    pos = -100
    gate = None
    for F, (t, i) in enumerate(frs):
        pos = max(pos + 2, fuse[F] - LA, luse.get(F - 8, -100) + 1, gate.pos + 1 if gate else -100)
        for half in range(2):
            if fuse[F] < 12:
                pro.append(rd_w(F, t, i, half))
            else:
                prev = add("D", rd_w(F, t, i, half), max(pos, 0) + half, fuse[F] - 4, [prev, gate])
        gate = None
        if F < 28 * 14 and F % 14 == 13 and (F // 14 & 1 or F // 14 < nb2):
            t = F // 14
            s, p = (t + 1) >> 1, (t + 1) & 1
            need = [("W", s, q) for q in (range(4) if p == 0 and t + 1 < nb2 else range(NWQ))]
            if t == 27:
                need = [("W", s2, q) for s2 in (14, 15) for q in range(NWQ)]
            assert pos + 5 <= beta(t), (t, pos)
            barw[t] = add("S", lambda need=need, F=F: b.wait(vm=need, lg=[("wf", F, 1)]), beta(t), beta(t) + 1, [prev])
            gate = bar[t] = add("S", ["s_barrier" if not O.get("nobar") or t < 4 or t == 27 else "s_nop 0"], beta(t) + 1, beta(t) + 2, [barw[t]])
    xpos = {}
    xrd = {}
    xw = {}
    for t in range(1 if nb2 else 2, 32):
        for jm in range(4):
            s, a = t >> 1, jm >> 1
            k = 2 * (jm & 1) + (t & 1)
            if t == 1:
                pos = 2 + 3 * jm
            elif s == 1:
                pos = 56 + (18, 34)[a] + k
            elif s == 15:
                pos = NM + 4 * a + k
            else:
                pos = 56 * (2 * (s - 1) + a) + 34 + k
            xpos[t, jm] = pos
            if t > 1 and (s, a) not in xw:
                xw[s, a] = add("S", lambda s=s, a=a: b.wait(vm=[("X", s, 4 * a + 3)]), pos - 1, pos + 4)
            xrd[t, jm] = add("D", rd_x(t, jm), pos, pos + 5, [xw.get((s, a))])
    xlast = lambda s, a: max(((t, jm) for t in (2 * s, 2 * s + 1) for jm in (2 * a, 2 * a + 1) if (t, jm) in xpos), key=lambda x: xpos[x])
    xall = lambda s, a: [(t, jm) for t in (2 * s, 2 * s + 1) for jm in (2 * a, 2 * a + 1)]

    usets = ([("a", aDF + 16 * i) for i in range(10)] + [("v", r) for r in (48, 32, 80, 96, 64, 144, 160, 176, 128, 112)])
    NS = len(usets)
    ureg = lambda u: usets[u % NS]
    unit_lds = lambda slot: slot * 4096

    def unit_row(u, q):
        if u < 4:
            return 112 * (2 * u + (q & 1)) + 8 * (q >> 1)
        return 112 * ((u - 4) & 7) + 16 + 32 * ((u - 4) >> 3) + 8 * q

    def pre_d(u, sl, q):
        if O.get("dx"):
            c_ = unit_row(u & ~3, q) * 2048 - q * 1024
            return m0_ops(sM0X, unit_lds(sl)) + [[f"{'s_lshl1_add_u32' if u < 4 else 's_add_u32'} s{sA}, s{sTS + (u & 3)}, {c_}"]]
        return m0_ops(sM0X, unit_lds(sl)) + [[f"s_mov_b32 s{sA}, {unit_row(u, q) * 2048 - q * 1024}"]]

    def dma_d(u, q):
        if u >= O.get("nod", 99):
            b.vm_tag["D", u, q] = 0
            return
        b.vm(f"buffer_load_dwordx4 v{vDD}, {R('s', sD)}, s{sA} offen offset:{q * 1024} {O.get('dfl', '')} lds", ("D", u, q))

    def rd_d(u, slot, nb, half):
        off = unit_lds(slot) + half * 2048
        p_, r_ = ureg(u)
        return lambda: b.lg(f"ds_read_b64_tr_b16 {R(p_, r_ + 4 * nb + 2 * half, 2)}, v{vDR + nb} offset:{off}", ("df", u, nb, half))

    chain = [None]

    def add_dma(groups, fn, pos, dead, deps=(), sdeps=()):
        deps = list(deps)
        p = chain[0]
        for gi, g in enumerate(groups):
            p = add("S", g, pos - len(groups) + gi - O.get("sear", 1), dead - 1, [p] + list(sdeps))
            p.setup = True
        chain[0] = add("V", fn, pos, dead, [p] + deps)
        return chain[0]

    NPF = O.get("npf", 10)
    done = set(pro_items[:npro]) | {("W", 0, q) for q in range(4)} | {("X", 0, q) for q in range(8)}
    queue = {"W": [("W", s, q) for s in range(16) for q in range(NWQ)], "X": [("X", s, q) for s in range(16) for q in range(8)],
             "D": [("D", u, q) for u in range(NPF) for q in range(4)]}
    for k in queue:
        queue[k] = [it for it in queue[k] if it not in done]
    gm, gh = O.get("gm", 8.0), O.get("gh", 5.0)
    d0, dper, dlat = O.get("d0", 150), O.get("dper", 138), O.get("dlat", 105)
    dlast = {}
    dfree = [0]

    def window(k, s, q):
        if k == "W":
            tb = 2 * (s - 3) + (q >= (4 if wrow else 3))
            if s >= 3 and tb not in bar:
                tb += 1
            tl = min(2 * s - 1 + (q >= 4), 27)
            if tl not in bar:
                tl -= 1
            return (beta(tb) + 2 if s >= 3 else 0), beta(tl), tb, tl
        if k == "X":
            hh = 2 * s + (q >> 2) - 3
            return (xpos[xlast(hh >> 1, hh & 1)] + 7 if hh >= (0 if nb2 else 2) else 0), xw[s, q >> 2].pos, hh, None
        early = max(O["dpos"][s] if "dpos" in O else d0 + dper * s, dfree[0])
        return early, early + O.get("dprio", 60), None, None
    fpos = 1.0
    lastk = None
    while any(queue.values()):
        heads = [queue[k][0] for k in queue if queue[k]]
        avail = [it for it in heads if window(*it)[0] <= fpos]
        if not avail:
            fpos = min(window(*it)[0] for it in heads)
            continue
        k, s, q = min(avail, key=lambda it: window(*it)[1] + (O.get("alt", 0) if it[0] == lastk else 0))
        lastk = k
        queue[k].pop(0)
        early, lim, a1, a2 = window(k, s, q)
        pos = int(fpos)
        assert pos + 2 < lim or k == "D", (k, s, q, pos, lim)
        if O.get("verbose"):
            print(k, s, q, "early", early, "issue", pos, "lim", lim, "ahead", lim - pos)
        deps = []
        if k == "W":
            o = add_dma(pre_w(s, q), lambda s=s, q=q: dma_w(s, q), pos, pos + 3, [bar[a1]] if s >= 3 else [])
            barw[a2].deps.append(o)
        elif k == "X":
            if a1 >= 0 and q & 3 == 0:
                tags = [("xf",) + x for x in xall(a1 >> 1, a1 & 1)]
                deps.append(add("S", lambda tags=tags: b.wait(lg=tags), pos - 1, pos + 3, [xrd.get(x) for x in xall(a1 >> 1, a1 & 1)]))
            o = add_dma(pre_x(s, q), lambda s=s, q=q: dma_x(s, q), pos, pos + 3, deps)
            xw[s, q >> 2].deps.append(o)
        else:
            if s and q == 0:
                deps.append(add("S", lambda s=s: b.wait(lg=[("df", s - 1, 3, 1)]), pos - 1, pos + 3, [dlast[s - 1]]))
            o = add_dma(pre_d(s, 3, q), lambda s=s, q=q: dma_d(s, q), pos, pos + 3, deps)
            if q == 3:
                r0 = pos + dlat
                dp = add("S", lambda s=s: b.wait(vm=[("D", s, 3)]), r0 - 1, r0 + 6, [o])
                for kk in range(8):
                    dp = add("D", rd_d(s, 3, kk & 3, kk >> 2), r0 + kk, r0 + kk + 10, [dp])
                dlast[s] = dp
                dfree[0] = r0 + 16
        if k != "D":
            last_dma = pos
        if k != "D" and s in O.get("miss", (4, 8, 12)) and not any(it[1] == s for kk in "WX" for it in queue[kk]):
            fpos += O.get("pause", 0)
        fpos += (gm if (k != "D" and s in O.get("miss", (4, 8, 12))) else gh) * (O.get("gw", 1.0) if k == "W" else 1.0)

    touches = []
    if O.get("touchd", 1):
        tps = O.get("tdpos", TDPOS)
        for i, tp in enumerate(tps):
            touches.append(add("V", lambda: b.vm("global_load_dword v23, v22, s[4:5]", "touch"), tp, tp + 3))
            if i + 1 < len(tps):
                valu[tp + 5].append(f"v_add_u32 v22, s{sTS}, v22" if O.get("tlite") else f"v_add_u32 v22, {TL * 128}, v22")

    if O.get("wt"):
        p_ = None
        for P_ in range(1, O.get("wtn", 6)):
            tp = max(112 * (2 * P_) - O.get("wta", 336), 2 + 8 * P_)
            p_ = add("S", [f"s_add_u32 s{sRT}, s{sTS + 2}, {P_}"], tp - 4, tp, [p_])
            p_ = add("S", [f"s_and_b32 s{sRT}, s{sRT}, 7"], tp - 3, tp, [p_])
            p_ = add("S", [f"s_mul_i32 s{sRT}, s{sRT}, s{sTS + 1}"], tp - 2, tp, [p_])
            p_ = add("V", lambda: b.vm(f"buffer_load_dword v25, v26, {R('s', sW)}, s{sRT} offen", "touch"), tp, tp + 3, [p_])
            touches.append(p_)
    for i_, tp in enumerate(O.get("xt", ())):
        if tp >= 0:
            touches.append(add("V", lambda i_=i_: b.vm(f"global_load_dword v25, v26, s[46:47] offset:{1024 * i_}", "touch"), tp, tp + 3))
    if O.get("codepf", 1):
        for tp in O.get("cpos", (1490,)):
            assert tp < NM - 60
            touches.append(add("V", lambda: b.vm(f"global_load_dword v24, v{vOUT}, s[46:47]", "touch"), tp, tp + 3))
    if touches:
        add("S", lambda: b.wait(vm=["touch"]), NM + 12, NM + 18, touches)

    add("X", [f"s_cmp_eq_u32 s{sCP}, 0", "s_cbranch_scc1 L_announce", "L_announced:"], beta(3) + 4, None, [bar[3]])
    slow.extend(["L_announce:", f"v_mov_b32 v{vFV}, 1", "s_mov_b64 exec, 1",
                 f"buffer_store_dword v{vFV}, off, {R('s', sG)}, 0 sc1", "s_mov_b64 exec, -1", "s_branch L_announced"])

    def poll(tag, srd, voff, soff, val, pos_issue, pos_check, deps=()):
        ld = (f"buffer_load_dword v{vFV}, off, {R('s', srd)}, {soff} sc1" if voff is None else
              f"buffer_load_dword v{vFV}, v{voff}, {R('s', srd)}, {soff} offen sc1")
        if O.get("nopoll"):
            val = 0
        o1 = add("V", lambda: b.vm(ld, tag), pos_issue, pos_issue + 3, deps)
        o2 = add("S", lambda: b.wait(vm=[tag]), pos_check - 1, pos_check + 1, [o1])
        o3 = add("X", [f"v_cmp_gt_u32 vcc, {val}, v{vFV}", f"s_cbranch_vccnz L_slow_{tag}", f"L_back_{tag}:"], pos_check, pos_check + 1, [o2])
        slow.extend([f"L_slow_{tag}:", f"s_mov_b32 s{sSPIN}, 0", f"L_spin_{tag}:", ld,
                     f"s_add_u32 s{sSPIN}, s{sSPIN}, 1", f"s_cmp_gt_u32 s{sSPIN}, 0x40000",
                     "s_cbranch_scc1 L_end", "s_waitcnt vmcnt(0)",
                     f"v_cmp_gt_u32 vcc, {val}, v{vFV}", f"s_cbranch_vccnz L_spin_{tag}", f"s_branch L_back_{tag}"])
        return o3
    pcnt = poll("cnt", sG, None, "0", 1, 56 * 16 + 50, 56 * 19 + 50)

    assert last_dma + 4 < NM - 24
    vHD, vHR, vHR2, vPW, vPR, vHD2 = 5, 6, 7, 8, 9, 10
    aset = [f"v_mov_b32 v{vHD}, v29", f"v_add_u32 v{vHR}, 65536, v28", f"v_add_u32 v{vHR2}, 131072, v28",
            f"v_lshl_add_u32 v{vPW}, v0, 2, s{sM0X}", f"v_xor_b32 v{vPR}, 32768, v{vPW}",
            f"v_sub_u32 v{vHD2}, v29, v{vL16}", f"v_lshl_add_u32 v{vHD2}, v{vHD2}, 3, v{vL16}"]
    if O.get("full"):
        aset += ["v_and_b32 v2, 7, v0", "v_lshlrev_b32 v2, 11, v2", f"v_bfe_u32 v{vOUT}, v0, 3, 1", f"v_lshl_add_u32 v2, v{vOUT}, 6, v2"]
    elif not O.get("tr"):
        aset += ["v_and_b32 v2, 15, v0", "v_lshlrev_b32 v2, 11, v2"]
    aset += [] if O.get("tr") else [ f"v_bfe_u32 v{vOUT}, v0, 4, 1",
             f"v_lshl_add_u32 v2, v{vOUT}, 5, v2", f"v_lshrrev_b32 v{vOUT}, 5, v0", f"v_lshl_add_u32 v{vOUT}, v{vOUT}, 4, v2"]
    if O.get("lin"):
        aset += ["v_lshrrev_b32 v2, 3, v0", "v_lshlrev_b32 v2, 11, v2", f"v_and_b32 v{vOUT}, 7, v0", f"v_lshl_add_u32 v{vOUT}, v{vOUT}, 4, v2"]
    for i, x in enumerate(aset):
        valu[NM - 24 + i].append(x)

    hout = lambda blk, jm: acc1(blk, 0, jm) if blk < 5 else 112 + 4 * jm

    def epi(blk):
        ins = []
        for j0 in (0, 2):
            g = [acc1(blk, 0, j0) + x for x in range(8)]
            t = [vTMP + x for x in range(8)]
            at = max(adone[2 * blk, j0], adone[2 * blk, j0 + 1]) + 7
            ins += [(at, f"v_mul_f32 v{t[x]}, s{sNL2E}, v{g[x]}") for x in range(8)]
            ins += [(at, f"v_exp_f32 v{t[x]}, v{t[x]}") for x in range(8)]
            ins += [(at, f"v_add_f32 v{t[x]}, 1.0, v{t[x]}") for x in range(8)]
            ins += [(at, f"v_rcp_f32 v{t[x]}, v{t[x]}") for x in range(8)]
            ins += [(at, f"v_mul_f32 v{g[x]}, v{g[x]}, v{t[x]}") for x in range(8)]
        for j0 in (2, 0):
            g = [acc1(blk, 0, j0) + x for x in range(8)]
            u = [acc1(blk, 1, j0) + x for x in range(8)]
            at = max(adone[2 * blk + 1, j0], adone[2 * blk + 1, j0 + 1]) + 7
            ins += [(at, f"v_mul_f32 v{u[x]}, v{g[x]}, v{u[x]}") for x in range(8)]
            for x in range(0, 8, 2):
                jm = j0 + (x >> 2)
                if blk == 0:
                    d = acc1(0, 0, j0) + (x >> 1)
                elif blk & 1:
                    d = hout(blk, jm) + ((x >> 1) & 1)
                else:
                    d = hout(blk - 1, jm) + 2 + ((x >> 1) & 1)
                ins.append((at, f"v_cvt_pk_bf16_f32 v{d}, v{u[x]}, v{u[x + 1]}"))
            if blk == 0:
                d = acc1(0, 0, j0)
                ins.append((at, "s_nop 1"))
                ins.append((at, f"v_permlane32_swap_b32 v{d}, v{d + 2}"))
                ins.append((at, f"v_permlane32_swap_b32 v{d + 1}, v{d + 3}"))
                ins.append((at, ("st", f"buffer_store_dwordx4 {R('v', d)}, v{vHL}, {R('s', sHS)}, s{sHLB if j0 else sHLA} offen sc1", 1, None)))
            elif not blk & 1:
                r = sHB if j0 else sHA
                for jm in (j0, j0 + 1):
                    ins.append((at, ("st", f"buffer_store_dwordx4 {R('v', hout(blk - 1, jm))}, v{vL16}, {R('s', sHS)}, s{r} offen offset:{(jm & 1) * 1024} sc1",
                                     1 + blk // 2, f"s_add_u32 s{r}, s{r}, 65536" if jm & 1 and blk < 6 else None)))
        return ins

    tslot = lambda n: 17 if n < NM else 19 if n < NM + 26 else O.get("tt", 34) if n < NT else 12 + 560 // O.get("e6", 60) if n < NT + 2 + O.get("e6", 60) else O.get("t2", 17)
    T = {NM - 16: 0}
    for n in range(NM - 16, NT + NE + 896 + 200):
        T[n + 1] = T[n] + tslot(n)

    def at_time(t):
        n = NM - 16
        while T[n] < t:
            n += 1
        return n
    cost = lambda x: 0 if isinstance(x, tuple) else 2 if ("exp" in x or "rcp" in x) else 1
    last_store = {}
    stimes = []
    def put_store(x, pos):
        ps = max(pos + 1, at_time(stimes[-1] + O.get("sg%d" % x[2], O.get("sg", 400))) if stimes else 0)
        stimes.append(T[ps])
        o = add("V", lambda x=x: b.vm(x[1], ("H", x[2])), ps, ps + 2, [last_store.get(x[2])])
        last_store[x[2]] = o
        if x[3]:
            add("S", [x[3]], ps, ps + 8, [o])

    def epi_packed():
        P2 = lambda r: R("v", r, 2)
        t = vTMP
        tail_ = {}
        for blk in range(7):
            ins = [x for _, x in epi(blk)]
            k = 80
            for j0 in (2, 0):
                k += 8
                e_ = k
                while e_ < len(ins) and not (isinstance(ins[e_], str) and ins[e_].startswith("v_mul")):
                    e_ += 1
                tail_[blk, j0] = ins[k:e_]
                k = e_
        p1 = lambda blk, j0: [f"v_pk_mul_f32 {P2(t + x)}, {P2(acc1(blk, 0, j0) + x)}, s[{sNL2E}:{sNL2E + 1}] op_sel_hi:[1,0]" for x in (0, 2, 4, 6)]
        p2 = [f"v_pk_add_f32 {P2(t + x)}, {P2(t + x)}, 1.0 op_sel_hi:[1,0]" for x in (0, 2, 4, 6)]
        p3 = lambda blk, j0: [f"v_pk_mul_f32 {P2(acc1(blk, 0, j0) + x)}, {P2(acc1(blk, 0, j0) + x)}, {P2(t + x)}" for x in (0, 2, 4, 6)]
        p4 = lambda blk, j0: [f"v_pk_mul_f32 {P2(acc1(blk, 1, j0) + x)}, {P2(acc1(blk, 0, j0) + x)}, {P2(acc1(blk, 1, j0) + x)}" for x in (0, 2, 4, 6)]
        gav = lambda blk, j0: max(adone[2 * blk, j0], adone[2 * blk, j0 + 1]) + O.get("ga", 5)
        uav = lambda blk, j0: max(adone[2 * blk + 1, j0], adone[2 * blk + 1, j0 + 1]) + O.get("ga", 5)
        done = {}
        pos = gav(0, 0)
        valu[pos].extend(p1(0, 0))
        pend = []

        def flush(pos):
            for x in pend:
                if isinstance(x, tuple):
                    put_store(x, pos)
                else:
                    valu[pos].append(x)
                    if len(valu[pos]) >= 2 and x.startswith("v_cvt"):
                        pos += 1
            del pend[:]
            return pos

        def trans(op, pos, n):
            last = flush(pos + 1)
            at = [pos + n - (7 - x) * (n - 1) // 8 if x < 7 else pos + n for x in range(8)]
            at[6] = pos + n
            for x in range(8):
                valu[max(at[x], pos + 1)].append(f"{op} v{t + x}, v{t + x}")
            return pos + n, last
        for blk in range(7):
            for j0 in (0, 2):
                n = O.get("nt0", 5) if blk == 0 else O.get("nt", 8) if pos < NT else O.get("nt2", 8)
                pos, last = trans("v_exp_f32", pos, n)
                if j0 == 0 and blk:
                    done[blk - 1] = last + 1
                if j0 == 2:
                    pos = max(pos, uav(blk, 0))
                    valu[pos].extend(p4(blk, 0))
                    pend.extend(tail_[blk, 0])
                valu[pos].extend(p2)
                pos, last = trans("v_rcp_f32", pos, n)
                nx = (blk, 2) if j0 == 0 else (blk + 1, 0)
                if nx[0] < 7:
                    pos = max(pos, gav(*nx))
                valu[pos].extend(p3(blk, j0))
                if j0 == 2:
                    assert pos >= uav(blk, 2)
                    valu[pos].extend(p4(blk, 2))
                    pend.extend(tail_[blk, 2])
                if nx[0] < 7:
                    valu[pos].extend(p1(*nx))
        done[6] = flush(pos + 1) + 1
        return done

    fp = 0.0
    edone = {}
    if O.get("pk"):
        edone = epi_packed()
    for blk in range(0 if O.get("pk") else 7):
        for at, x in epi(blk):
            if isinstance(x, tuple):
                ps = max(pos + 1, at_time(stimes[-1] + O.get("sg%d" % x[2], O.get("sg", 400))) if stimes else 0)
                stimes.append(T[ps])
                o = add("V", lambda x=x: b.vm(x[1], ("H", x[2])), ps, ps + 2, [last_store.get(x[2])])
                last_store[x[2]] = o
                if x[3]:
                    add("S", [x[3]], ps, ps + 8, [o])
            else:
                fp = max(fp, at)
                pos = int(fp)
                valu[pos].append(x)
                fp += cost(x) / (O.get("er0", 5.0) if blk == 0 else O.get("er", 4.4) if pos < NT else O.get("er2", 2.5))
        edone[blk] = pos + 1
    EE = edone[6]
    assert edone[5] <= NT + 30 and EE <= NT + 94
    if O.get("verbose"):
        print("epilogue ends", {k: v - NM for k, v in edone.items()})

    flagop = {}

    def flag(stage, pos, soff=sFP, val=None):
        valu[pos - 2].append(f"v_mov_b32 v2, {stage if val is None else val}")
        o = add("S", lambda: b.wait(vm=[("H", stage)]), pos - 1, pos + 1, [last_store[stage], pcnt])

        def f():
            e("s_mov_b64 exec, 1")
            b.vm(f"buffer_store_dword v2, off, {R('s', sF)}, s{soff} sc1")
            e("s_mov_b64 exec, -1")
        flagop[stage] = add("X", f, pos, pos + 2, [o])
    for st in range(1, 5):
        if st == 3 and O.get("no3"):
            continue
        flag(st, at_time(T[last_store[st].pos] + O.get("fd%d" % st, O.get("fd", 1000))))

    KL = 16
    JL = [0, 2, 1, 3, 4, 5, 6, 7]
    quads = [(k0, jl) for k0 in range(0, 28 - KL, 4) for jl in range(8)] + [(k0, jl) for jl in JL for k0 in range(28 - KL, 28, 4)]
    frags = [(k0 + k, jl) for k0, jl in quads for k in range(4)]
    hreg = lambda H: WR[H % 8]
    started = set()
    nchain = 0
    for Q, (k0, jl) in enumerate(quads):
        for nb in (range(4) if Q & 1 else range(3, -1, -1)):
            for k in (range(3, -1, -1) if nchain & 1 else range(4)):
                ks, H = k0 + k, 4 * Q + k
                d = R(acc2f(jl), acc2(jl, nb))
                c = d if (jl, nb) in started else "0"
                started.add((jl, nb))
                slots.append((f"v_mfma_f32_16x16x32_bf16 {d}, {R(ureg(ks)[0], ureg(ks)[1] + 4 * nb)}, {R('a', hreg(H))}, {c}",
                              [("df", ks, nb, 1), ("hf", H)], []))
            nchain += 1
    NEND = len(slots)
    first_use = lambda u: N2 + 16 * min(H >> 2 for H, (ks, jl) in enumerate(frags) if ks == u)
    last_use = lambda u: N2 + 16 * max(H >> 2 for H, (ks, jl) in enumerate(frags) if ks == u) + 15
    HB = [131072, 65536, 98304]

    beta2 = lambda g: N2 + 64 * g + O.get("beta2", 46) if g >= 0 else NT - O.get("beta2i", 13)
    b2w, b2 = {}, {}
    b2lg = defaultdict(list)
    hp = None
    for g in range(-1, 14):
        if g >= 0:
            for i in range(16):
                H = 16 * g + i
                pos = N2 + 16 * ((H >> 2) - 1) + O.get("hsp", 2) * (H & 3)
                if i < 4:
                    pos = max(pos, beta2(g - 1) + 2 + (H & 3))
                off = HB[g % 3] + i * 1024
                v, off = (vHR, off - 65536) if off < 131072 else (vHR2, off - 131072)
                txt = f"ds_read_b128 {R('a', hreg(H))}, v{v} offset:{off}"
                hp = add("D", lambda txt=txt, H=H: b.lg(txt, ("hf", H)), pos, max(pos + 1, min(pos + 5, N2 + 16 * (H >> 2) - 4)), [hp, b2[g - 1] if i == 0 else None])
            b2lg[g].append(("hf", 16 * g + 15))
        else:
            hp = prev
            b2lg[g].append(("wf", len(frs) - 1, 1))
        if g < 13:
            b2w[g] = add("S", lambda g=g: b.wait(vm=[("h", 8 * g + 15)], lg=b2lg[g]), beta2(g), beta2(g) + 1, [hp])
            b2[g] = add("S", ["s_barrier" if not O.get("nobar") else "s_nop 0"], beta2(g) + 1, beta2(g) + 2, [b2w[g]])

    VG = O.get("vg", 70)
    LAT = O.get("lat", 900)
    pf = O.get("pollpf", 900)
    SK = O.get("sk", 100)

    hpos = {}
    h0 = NM + O.get("h0", 150)
    for pi in range(112):
        g, i = pi >> 3, pi & 7
        if g == 0:
            hpos[pi] = at_time(T[h0] + i * VG)
        elif g <= 2:
            hpos[pi] = at_time(T[beta2(-1) + 2] + (pi - 8) * O.get("vg1", 75) + (O.get("g2d", 0) + (pi - 16) * O.get("vg2", 40) if g == 2 else 0))
        else:
            hpos[pi] = max(beta2(g - 3) + 3 + (8 if g < O.get("gq", 9) else O.get("hq", 8)) * i, hpos[pi - 1] + O.get("hmin", 4))
    slot_free, slot_dep = {}, {}
    for sl, (s_, a) in enumerate(((15, 0), (15, 1), (14, 1))):
        slot_free[sl] = xpos[xlast(s_, a)] + 7
        slot_dep[sl] = ([xrd[x] for x in xall(s_, a)], [("xf",) + x for x in xall(s_, a)])
    slot_free[3] = max(dfree[0], NM - 16)
    slot_dep[3] = ([dlast[NPF - 1]], [("df", NPF - 1, 3, 1)]) if NPF else ([], [])
    htimes = sorted(T[p_] for p_ in hpos.values())
    tn = 0
    rdiv = []
    dmas = []
    for u in range(NPF, 28):
        sl = min(slot_free, key=lambda x: (slot_free[x], x))
        dep, tag = slot_dep[sl]
        dps = []
        for q in range(4):
            tn = max(tn, T[slot_free[sl]])
            while True:
                gapd = VG if tn < T[N2] else O.get("vgd", 150)
                keep = gapd - 8 if tn < T[N2] else 50
                near = [t + keep for t in htimes if abs(t - tn) < keep]
                near += [t + SK for t in stimes if t - 40 < tn < t + SK]
                if not near:
                    break
                tn = max(near)
            pos = at_time(tn)
            dps.append(pos)
            tn += gapd
        ready = at_time(T[pos] + LAT)
        free = {10: edone[0], 11: last_store[1].pos + 4, 12: edone[1], 13: edone[2], 14: last_store[2].pos + 4, 15: edone[3],
                16: edone[4], 17: edone[4], 18: last_store[3].pos + 4, 19: last_store[4].pos + 4}.get(
            u, NM if u < NS else last_use(u - NS) + 1)
        r0 = max(min(ready, first_use(u) - 26), free, pos + 4)
        while True:
            sp = 1 if r0 < NT else 2
            r1 = int(r0 + 8 * sp)
            clash = [iv for iv in rdiv if iv[0] < r1 and r0 < iv[1]]
            if not clash:
                break
            r0 = max(iv[1] for iv in clash)
        rdiv.append((r0, r1))
        assert r1 <= first_use(u) - 4, (u, r0, first_use(u))
        if O.get("verbose"):
            print("unit", u, "slot", sl, "dma", dps, "read", r0, "use", first_use(u))
        ws = []
        k = 0
        dp = {11: last_store[1], 14: last_store[2], 18: last_store[3], 19: last_store[4]}.get(u)
        for half in range(2):
            p_ = int(r0 + sp * k)
            w = add("S", lambda u=u, half=half: b.wait(vm=[("D", u, 2 * half + 1)]), p_ - 1, p_ + 3)
            ws.append(w)
            for nb in range(4):
                p_ = int(r0 + sp * k)
                dp = add("D", rd_d(u, sl, nb, half), p_, min(p_ + 6, first_use(u) - 2), [w, dp])
                k += 1
        for q in range(4):
            dmas.append((dps[q], "D", (u, sl, q, dep, tag, ws)))
        dlast[u] = dp
        slot_free[sl] = r1 + 5
        slot_dep[sl] = ([dp], [("df", u, 3, 1)])
    for pi in range(112):
        dmas.append((hpos[pi], "h", pi))
    dmas.sort(key=lambda x: x[0])
    stage_of = lambda ks: 1 if ks < 4 else 2 if ks < 12 else 4 if O.get("no3") else 2 + ((ks - 4) >> 3)
    seen = 0
    chk = pcnt
    for pos, kind, a in dmas:
        if kind == "D":
            u, sl, q, dep, tag, ws = a
            deps = []
            if q == 0:
                deps = [add("S", lambda tag=tag: b.wait(lg=tag), pos - 1, pos + 3, dep)]
            o = add_dma(pre_d(u, sl, q), lambda u=u, q=q: dma_d(u, q), pos, pos + 3, deps)
            if q & 1:
                ws[q >> 1].deps.append(o)
        else:
            pi = a
            ks, jl = frags[2 * pi]
            ks1 = frags[2 * pi + 1][0]
            g, i = pi >> 3, pi & 7
            deps = [bar[27] if g == 0 else b2[max(g - 3, -1)]]
            if stage_of(ks1) > seen:
                seen = stage_of(ks1)
                chk = poll(f"f{seen}", sF, vFP, f"s{sFC}", seen, max(at_time(T[pos] - O.get("pf%d" % seen, pf)), chk.pos + 2), pos - 1, [chk])
                chk.deps.append(flagop[seen])
                assert flagop[seen].pos < chk.pos
                if O.get("verbose"):
                    print("poll", seen, "check at", pos - 1 - NM, "own flag at", flagop[seen].pos - NM)
            deps.append(chk)
            g_ = m0_ops(sM0H, HB[g % 3] + (i >> 1) * 4096) + [[f"s_mov_b32 s{sA}, {ks * 8192 + jl * 1024 - (i & 1) * 2048}"]]
            if O.get("dx"):
                g_[-1] = [f"s_add_u32 s{sA}, s{sRT + (i & 1)}, {(ks & ~3) * 8192 + jl * 1024 + (2048 if i & 1 == 0 else 0)}"]
            txt = f"buffer_load_dwordx4 v{vHD if ks1 == ks else vHD2}, {R('s', sHL)}, s{sA} offen offset:{(i & 1) * 2048} sc1 lds"
            o = add_dma(g_, lambda txt=txt, pi=pi: b.vm(txt, ("h", pi)) if pi < O.get("noh", 999) else b.vm_tag.__setitem__(("h", pi), 0), pos, pos + 3, deps)
            if i == 7:
                b2w[g - 1].deps.append(o)
                assert pos + 3 < beta2(g - 1), (pi, pos, beta2(g - 1))

    NQ = N2 + 32 * (28 - KL)
    eend = lambda jl: NQ + 64 * (JL.index(jl) + 1)
    add("X", [f"s_add_u32 s{sHS}, s{sF}, {XOFF}", f"s_addc_u32 s{sHS + 1}, s{sF + 1}, 0", f"s_mov_b32 s{sHS + 2}, {1024 * 8192}"],
        NQ, None, [last_store[4]])
    valu[NQ + 8].append(f"v_add_u32 v{vHL}, 4096, v{vL16}")
    add("S", [f"s_mov_b32 s{sB_}, 32768"], NQ + 10)
    if O.get("tr"):
        tset = ["v_and_b32 v26, 15, v0", "v_lshrrev_b32 v27, 5, v0", "v_and_b32 v28, 7, v0", "v_xor_b32 v27, v27, v28",
                "v_lshlrev_b32 v27, 4, v27", "v_lshl_add_u32 v27, v26, 7, v27", "v_bfe_u32 v26, v0, 4, 1", "v_lshl_add_u32 v27, v26, 3, v27",
                f"v_add_u32 v22, s{sM0X}, v27", "v_xor_b32 v23, 32, v22", "v_xor_b32 v24, 64, v22", "v_xor_b32 v25, 96, v22",
                "v_lshrrev_b32 v26, 3, v0", "v_xor_b32 v27, v26, v28", "v_lshlrev_b32 v27, 4, v27", "v_lshl_add_u32 v27, v26, 7, v27",
                f"v_add_u32 v29, s{sM0X}, v27", "v_lshlrev_b32 v26, 11, v26", f"v_lshl_add_u32 v{vOUT}, v28, 4, v26"]
        for n_, x in enumerate(tset):
            valu[NQ + 16 + n_].append(x)
    if O.get("full") or O.get("tr"):
        add("S", [f"s_movk_i32 s{sXQ}, 16384"], NQ + 12)
        add("S", [f"s_mov_b32 s{sXQ + 1}, 49152"], NQ + 14)

    zone = lambda jl: 32 if jl & 1 else 48

    def lds_swap(jl):
        off = (jl >> 2) * 8192 + (jl & 1) * 4096
        wp = add("S", lambda: b.wait(lg=[("df", u, 3, 1) for u in range(28)]), eend(jl) + 4, None, list(dlast.values()))
        for k in range(16):
            pos = eend(jl) + 6 + (O.get("wsp", 8) * k) // 4
            txt = f"ds_write_b32 v{vPW}, a{acc2(jl, 0) + k} offset:{off + k * 256}"
            wp = add("D", lambda txt=txt, k=k: b.lg(txt, ("pw", jl, k >> 2)), pos, pos + 3, [wp])
        g = min(g for g in b2 if beta2(g) > pos + 6)
        b2w[g].deps.append(wp)
        b2lg[g].append(("pw", jl, 3))
        rp = b2[g]
        for k in range(8):
            pos = beta2(g) + 3 + (3 * k) // 2
            txt = f"ds_read2st64_b32 {R('v', zone(jl) + 2 * k, 2)}, v{vPR} offset0:{off // 256 + 2 * k} offset1:{off // 256 + 2 * k + 1}"
            rp = add("D", lambda txt=txt, k=k: b.lg(txt, ("pr", jl, k >> 1)), pos, pos + 4, [rp])
        return rp
    xldl = {}
    for e_ in range(2):
        ra = lds_swap(e_)
        p0 = eend(2 + e_) + 4
        assert ra.pos + 4 < p0
        add("S", lambda e_=e_: b.wait(lg=[("pr", e_, 3)]), p0 - 1, p0, [ra])
        sp_ = None
        for k in range(4):
            pos = p0 + 2 * k
            a, s_ = acc2(2 + e_, k), zone(e_) + 4 * k
            for x in range(4):
                valu[pos + (x >> 1)].append(f"v_add_f32 v{a + x}, v{a + x}, v{s_ + x}")
            ps = p0 + 2 + O.get("ssp%d" % e_, (16, 8)[e_]) * k
            txt = f"buffer_store_dwordx4 {R('v', a)}, v{vHL if e_ else vL16}, {R('s', sHS)}, s{sXO} offen offset:{k * 1024} {O.get('xst', 'sc1')}"
            if O.get("xhalf") and k & 1 == 0:
                continue
            sp_ = add("V", lambda txt=txt, e_=e_: b.vm(txt, ("H", 5 + e_)), ps, ps + 2, [sp_])
        last_store[5 + e_] = sp_
        if O.get("x1") and e_ == 0:
            continue
        xf = sp_.pos + O.get("xfd%d" % e_, (64, 56)[e_])
        flag(5 + e_, xf, sXFO, 1 + e_)
        xc = min(xf + O.get("xpd%d" % e_, (140, 110)[e_]), NEND - 8)
        chk = poll(f"fx{e_}", sF, None, f"s{sXFI}", 1 + e_, max(xc - O.get("xpf%d" % e_, 50), chk.pos + 2), xc, [chk])
        chk.deps.append(flagop[5 + e_])
        assert flagop[5 + e_].pos < chk.pos
        lp = chk
        if O.get("x1"):
            for k in range(4):
                txt = f"buffer_load_dwordx4 {R('v', acc2(2, k))}, v{vL16}, {R('s', sHS)}, s{sXI} offen offset:{k * 1024} sc1"
                lp = add("V", lambda txt=txt, k=k: b.vm(txt, ("xr", 0, k)), xc + 1 + k, xc + 3 + k, [lp])
            xldl[0] = lp
            xc += 4
        for k in range(4):
            txt = f"buffer_load_dwordx4 {R('v', acc2(2 + e_, k))}, v{vHL if e_ else vL16}, {R('s', sHS)}, s{sXI} offen offset:{k * 1024} sc1"
            if O.get("xhalf") and k & 1 == 0:
                continue
            lp = add("V", lambda txt=txt, k=k, e_=e_: b.vm(txt, ("xr", e_, k)), xc + 1 + k, xc + 3 + k, [lp])
        xldl[e_] = lp
        if O.get("verbose"):
            print("exchange", e_, "adds", p0, "flag", xf, "check", xc, "end", NEND)
    rc = [lds_swap(4), lds_swap(5)]

    def fin(e_, k2, pk, pre=False):
        ins = []
        for k in (k2, k2 + 1):
            a = acc2(6 + e_, k)
            for s_ in (zone(e_) + 4 * k, acc2(2 + e_, k))[:1 if pre else 2]:
                if pk:
                    ins += [f"v_pk_add_f32 {R('v', a + x, 2)}, {R('v', a + x, 2)}, {R('v', s_ + x, 2)}" for x in (0, 2)]
                else:
                    ins += [f"v_add_f32 v{a + x}, v{a + x}, v{s_ + x}" for x in range(4)]
        a = acc2(6 + e_, k2)
        ins += [f"v_cvt_pk_bf16_f32 v{a + x}, v{a + 2 * x}, v{a + 2 * x + 1}" for x in range(4)]
        ins += ["s_nop 1", f"v_permlane16_swap_b32 v{a}, v{a + 2}", f"v_permlane16_swap_b32 v{a + 1}, v{a + 3}"]
        so = f"s{sB_}" if e_ else "0"
        st = f"buffer_store_dwordx4 {R('v', a)}, v{vOUT}, {R('s', sO)}, {so} offen offset:{(k2 >> 1) * 64} {O.get('ofl%d' % e_, O.get('ofl', 'sc1'))}".rstrip()
        return ins, st
    def fin_full(e_, pk):
        ins = fin(e_, 0, pk)[0] + fin(e_, 2, pk)[0]
        p_, q_ = acc2(6 + e_, 0), acc2(6 + e_, 2)
        ins += [f"v_mov_b32 v{p_ + 4 + x}, v{p_ + x}" for x in range(4)]
        ins += [f"v_mov_b32_dpp v{p_ + x}, v{q_ + x} row_ror:8 row_mask:0xf bank_mask:0xc" for x in range(4)]
        ins += [f"v_mov_b32_dpp v{q_ + x}, v{p_ + 4 + x} row_ror:8 row_mask:0xf bank_mask:0x3" for x in range(4)]
        so = (("0", f"s{sXQ}"), (f"s{sB_}", f"s{sXQ + 1}"))[e_]
        return ins, [f"buffer_store_dwordx4 {R('v', r_)}, v{vOUT}, {R('s', sO)}, {s_} offen sc1" for r_, s_ in zip((p_, q_), so)]
    def fin_tr(e_, pk, pre=False):
        blocks = []
        for k in range(4):
            a = acc2(6 + e_, k)
            ins = []
            for s_ in (zone(e_) + 4 * k, acc2(2 + e_, k))[:1 if pre else 2]:
                if pk and not (pre and k < 2):
                    ins += [f"v_pk_add_f32 {R('v', a + x, 2)}, {R('v', a + x, 2)}, {R('v', s_ + x, 2)}" for x in (0, 2)]
                else:
                    ins += [f"v_add_f32 v{a + x}, v{a + x}, v{s_ + x}" for x in range(4)]
            ins += [f"v_cvt_pk_bf16_f32 v{a + x}, v{a + 2 * x}, v{a + 2 * x + 1}" for x in range(2)]
            blocks.append((ins, f"ds_write_b64 v{22 + k}, {R('v', a, 2)} offset:{e_ * 4096}"))
        z = zone(e_)
        rds = [f"ds_read_b128 {R('v', z + 4 * x)}, v29 offset:{e_ * 4096 + x * 1024}" for x in range(2)]
        so = (("0", f"s{sXQ}"), (f"s{sB_}", f"s{sXQ + 1}"))[e_]
        sts = [f"buffer_store_dwordx4 {R('v', z + 4 * x)}, v{vOUT}, {R('s', sO)}, {so[x]} offen sc1" for x in range(2)]
        return blocks, rds, sts
    p0 = eend(6) + 5 if not O.get("x1") else max(eend(6) + 5, min(xc + O["x1"], NEND - 26))
    add("S", lambda: b.wait(lg=[("pr", 4, 3)], vm=[("xr", 0, 3)]), p0 - 1, p0, [rc[0], xldl[0]])
    if O.get("full"):
        p0 = min(p0, NEND - 34)
        ops[-1].pos, ops[-1].dead = p0 - 1, p0
        ins, sts = fin_full(0, False)
        for x in ins:
            valu[p0].append(x)
            if len(valu[p0]) >= 2 and not x.startswith("s_nop"):
                p0 += 1
        o = add("V", lambda: b.vm(sts[0]), p0 + 1, p0 + 2)
        add("V", lambda: b.vm(sts[1]), p0 + 2, p0 + 3, [o])
    if O.get("tr"):
        p0 = min(p0, NEND - 40)
        ops[-1].pos, ops[-1].dead = p0 - 1, p0
        blocks, rds, sts = fin_tr(0, False)
        o = None
        for k, (ins, w_) in enumerate(blocks):
            for n_, x in enumerate(ins):
                valu[p0 + n_ // 2].append(x)
            p0 += 5
            o = add("D", lambda w_=w_: b.lg(w_, "tw"), p0, p0 + 1, [o])
        o = add("S", lambda: b.wait(lg=["tw"]), p0 + 3, p0 + 4, [o])
        for x in range(2):
            o = add("D", lambda x=x: b.lg(rds[x], ("trd", x)), p0 + 4 + x, p0 + 6 + x, [o])
        for x in range(2):
            o = add("S", lambda x=x: b.wait(lg=[("trd", x)]), p0 + 10 + 2 * x, p0 + 11 + 2 * x, [o])
            o = add("V", lambda x=x: b.vm(sts[x]), p0 + 11 + 2 * x, p0 + 12 + 2 * x, [o])
        if O["tr"] == 2:
            p1 = NEND - 17
            assert p0 + 14 <= p1
            o = add("S", lambda: b.wait(lg=[("pr", 5, 3)], vm=[("xr", 1, 3)]), p1 - 1, p1, [rc[1], xldl[1], o])
            for x in range(16):
                valu[p1 + x // 2].append(f"v_add_f32 v{zone(1) + x}, v{zone(1) + x}, v{acc2(3, 0) + x}")
            for k, (ins, w_) in enumerate(fin_tr(1, True, True)[0][:2]):
                for n_, x in enumerate(ins):
                    valu[NEND - 8 + 4 * k + n_ // 2].append(x)
                o = add("D", lambda w_=w_: b.lg(w_, "tw"), NEND - 5 + 4 * k, NEND - 4 + 4 * k, [o])
    for k2 in (0, 2) if not (O.get("full") or O.get("tr")) else ():
        ins, st = fin(0, k2, False)
        for x in ins[:-3]:
            valu[p0].append(x)
            if len(valu[p0]) >= 2:
                p0 += 1
        valu[p0].extend(ins[-3:])
        add("V", lambda st=st: b.vm(st), p0 + 1, p0 + 2)
        p0 += 1
    if O.get("pre"):
        p1 = max(p0 + 1, NEND - 15)
        assert p1 + 11 <= NEND - 1, (p0, NEND)
        add("S", lambda: b.wait(lg=[("pr", 5, 3)], vm=[("xr", 1, 3)]), p1 - 1, p1, [rc[1], xldl[1]])
        for x in range(16):
            valu[p1 + x // 2].append(f"v_add_f32 v{zone(1) + x}, v{zone(1) + x}, v{acc2(3, 0) + x}")
        ins, st_last = fin(1, 0, False, True)
        for n_, x in enumerate(ins):
            valu[NEND - 4 + min(n_ // 4, 3)].append(x)

    b.wait(vm=[("W", 0, 3 if nb2 else NWQ - 1)])
    e("s_barrier")
    stamp()
    for f in pro[:4]:
        f()
    for jm in range(4):
        b.wait(vm=[("X", 0, 2 * jm + 1)])
        rd_x(0, jm)()
        if not nb2:
            rd_x(1, jm)()
    for f in pro[4:]:
        f()
    ops.sort(key=lambda o: (o.pos, o.seq))
    head = 0
    live = []

    def run(o, n):
        for d in o.deps:
            if not d.done:
                run(d, n)
        k = len(b.out)
        o.fn()
        o.done = True
        o.at = n
        if o.pos > n and o in ops:
            assert o.kind == "S" or O.get("lax"), ("forced early", o.kind, o.pos, n, b.out[-1])
        return sum(1 for x in b.out[k:] if not x.endswith(":"))

    over = two = 0
    notes = {112 * s_: f"GEMM1, K stage {s_} of this workgroup's order (64 deep)" for s_ in range(14)}
    notes.update({NM + 32 * k: f"GEMM1, last two stages of column block {k}; silu(gate) * up of the finished blocks in between" for k in range(7)})
    notes.update({NT + 128 * k: f"GEMM2, k-steps {4 * k}..{4 * k + 3} of all eight row blocks" for k in range(3)})
    notes.update({NQ + 64 * k: f"GEMM2, k-steps 12..27 of row block {jl}" for k, jl in enumerate(JL)})
    for n, (txt, lgt, vmt) in enumerate(slots):
        if n in notes:
            e("; ---- " + notes[n])
        if n in (NM, NT) or n in O.get("spos", ()):
            stamp()
        if txt is not None:
            assert b.issued(vmt, lgt), (n, txt)
            b.wait(vm=vmt, lg=lgt)
            e(txt)
            if n in O.get("trace", ()):
                r_ = TRC[O["trace"].index(n)]
                e(f"{'s_memrealtime' if O.get('rt') else 's_memtime'} s[{r_}:{r_ + 1}]")
        while head < len(ops) and ops[head].pos <= n:
            live.append(ops[head])
            head += 1
        live = [o for o in live if not o.done]
        live.sort(key=lambda o: (o.dead, o.seq))
        ready = lambda o: not o.done and all(d.done and (d.at < n or not d.setup or o.kind != "V") for d in o.deps)
        nxt = slots[n + 1] if n + 1 < len(slots) else (None, [], [])
        va = valu.pop(n, [])
        budget = 2 if txt is not None else 6
        if txt is not None and len(va) == 1 and cost(va[0]) == 1:
            budget = 1
        used = 0
        nmem = 0
        maxmem = O.get("maxmem", 1) if txt is not None and not NM + 24 <= n < EE else 9
        if nxt[0] is not None and b.issued(nxt[2], nxt[1]) and b.needs(nxt[2], nxt[1]):
            b.wait(vm=nxt[2], lg=nxt[1])
        else:
            while True:
                c = [o for o in live if o.kind == "S" and ready(o)]
                if not c:
                    break
                k = run(c[0], n)
                if k:
                    used += k - 1
                    break
        while True:
            c = [o for o in live if ready(o)]
            must = [o for o in live if not o.done and o.dead <= n + 1]
            if must:
                nmem += must[0].kind in "DV"
                used += run(must[0], n)
                continue
            if nmem >= maxmem:
                c = [o for o in c if o.kind not in "DV"]
            if used >= budget or not c:
                break
            mem = [o for o in c if o.kind in "DV"]
            if va and not mem:
                break
            nmem += bool(mem)
            used += run((mem or c)[0], n)
        two += nmem > 1 and n < NM
        over += max(0, used - budget) if n < NM else 0
        for x in va:
            e(x)
    for o in ops:
        if not o.done:
            run(o, NEND)
    assert not valu, list(valu)
    if O.get("verbose"):
        print("over budget in main:", over, "two mem:", two)
    stamp()

    b.wait(lg=[("pr", 5, 3)])
    if O.get("pre"):
        b.vm(st_last)
    e("s_nop 1" if O.get("pre") else "s_nop 0" if O.get("tr") else "s_nop 4")
    if O.get("full"):
        b.wait(vm=[("xr", 1, 3)])
        ins, sts = fin_full(1, True)
        for x in ins:
            e(x)
        for x in sts:
            b.vm(x)
    if O.get("tr"):
        blocks, rds1, sts1 = fin_tr(1, True, O["tr"] == 2)
        for k, (ins, w_) in enumerate(blocks):
            if O["tr"] == 2 and k < 2:
                continue
            if O["tr"] == 2 and k == 3:
                e("s_nop 1")
            b.wait(vm=[("xr", 1, k)])
            for x in ins:
                e(x)
            b.lg(w_, "tw")
        b.wait(lg=["tw"])
        for x in range(2):
            b.lg(rds1[x], ("trd", x))
        for x in range(2):
            b.wait(lg=[("trd", x)])
            b.vm(sts1[x])
    for k2 in () if O.get("full") or O.get("tr") else (2,) if O.get("pre") else (0, 2):
        b.wait(vm=[("xr", 1, k2 + 1)])
        ins, st = fin(1, k2, True, O.get("pre"))
        for x in ins:
            e(x)
        b.vm(st)
    if stamps:
        stamp()
        e("s_waitcnt vmcnt(0)")
        stamp(True)
        e("s_memrealtime s[98:99]")
        e("s_waitcnt lgkmcnt(0)")
        if "probe" in O:
            k = O["probe"]
            if O.get("probewg", 100) >= 0:
                e(f"s_cmp_lg_u32 s2, {O.get('probewg', 100)}")
                e("s_cbranch_scc1 L_end")
            if k == -1:
                e(f"s_mov_b32 s{sA}, 0")
            elif k == -2:
                e(f"s_sub_u32 s{sA}, s98, s100")
                e(f"s_mul_i32 s{sA}, s{sA}, 20")
            else:
                e(f"s_sub_u32 s{sA}, s{sST + k + 1}, s{sST + k}")
            e(f"s_min_u32 s{sA}, s{sA}, 100000")
            e(f"s_add_u32 s{sA}, s{sA}, 10000")
            e("L_probe:")
            e("s_memrealtime s[98:99]")
            e("s_waitcnt lgkmcnt(0)")
            e("s_sub_u32 s98, s98, s100")
            e(f"s_cmp_lt_u32 s98, s{sA}")
            e("s_cbranch_scc1 L_probe")
            e("s_endpgm")
        e(f"s_mov_b32 s{sF + 2}, 0x100000")
        e(f"s_lshl2_add_u32 s{sA}, s2, s{sWV}")
        e(f"s_lshl_b32 s{sA}, s{sA}, 7")
        e(f"s_add_u32 s{sA}, s{sA}, {SOFF}")
        vals = [sST + i + 2 * (sST + i >= sRT) for i in range(nst[0])] + [100, 98] + list(TRC[:len(O.get('trace', ()))])
        for i, r in enumerate(vals):
            e(f"v_mov_b32 v2, s{r}")
            e(f"buffer_store_dword v2, off, {R('s', sF)}, s{sA} offset:{4 * i}")
    e("s_endpgm")
    if "@SLOW@" in b.out:
        i = b.out.index("@SLOW@")
        b.out[i:i + 1] = slow
    else:
        for x in slow:
            e(x)
    e("L_end:")
    e("s_endpgm")
    if O.get("pads", 1):
        add_pads(b.out)
    return b.out, nst[0]


def isize(x):
    if x.endswith(":") or x.startswith((".", ";")):
        return 0
    op, _, rest = x.partition(" ")
    if op.startswith(("v_mfma", "ds_", "buffer_", "global_", "v_pk_", "s_load", "s_mem")):
        return 8
    if op in ("v_cvt_pk_bf16_f32", "v_lshl_add_u32", "v_bfe_u32", "v_mad_u32_u24", "v_mad_i32_i24", "v_mul_hi_u32", "v_lshl_add_u64", "v_mov_b32_dpp"):
        return 8
    if op.startswith(("s_waitcnt", "s_barrier", "s_nop", "s_branch", "s_cbranch", "s_endpgm", "s_movk", "s_setprio", "s_getpc", "s_getreg")):
        return 4
    for a in rest.split(","):
        a = a.strip()
        if a.startswith("L_"):
            return 8
        try:
            v = int(a, 0)
        except ValueError:
            continue
        if not -16 <= v <= 64:
            return 8
    return 4


def add_pads(out):
    i = out.index("L_main:") + 1
    addr, k = 0, 0
    at = []
    while out[i] != "L_end:":
        page = k * 4096
        prev = out[i - 1]
        nxt = addr + isize(out[i])
        shadow = prev.startswith("v_mfma") and not out[i].startswith("s_")
        glued = out[i].startswith(("s_addc", "s_cbranch", "v_permlane")) or out[i].endswith(":") or " exec," in prev or " exec," in out[i]
        if addr >= page and not glued and (shadow or k == 0 or nxt + 12 > page + 60):
            assert addr + 4 <= page + 64, (k, addr)
            out[i:i] = [f"L_pad{k}:", "s_nop 0"]
            at.append(i + 1)
            addr += 4
            i += 2
            k += 1
            continue
        addr = nxt
        i += 1
    assert k >= 4
    for j, p in enumerate(at):
        out[p] = f"s_cbranch_vccnz {'L_pad%d' % (j + 4) if j + 4 < k else 'L_warm'}"


HEADER = """; Fused SwiGLU FFN: out = (silu(x @ w_gate) * (x @ w_up)) @ w_down in one launch of 256 workgroups (one per CU).
; Kernarg layout (56 bytes, ptrs only, base s[0:1]):
; The instruction stream is written by a scheduling script (one MFMA per slot, everything else placed around them).
; @launch grid=(256,1,1) block=(256,1,1) lds=163840
.amdgcn_target "amdgcn-amd-amdhsa--gfx950"
.text
.globl {k}
.p2align 8
.type {k},@function
{k}:
"""
FOOTER = """.section .rodata,"a"
.p2align 6
.amdhsa_kernel {k}
  .amdhsa_next_free_vgpr 512
  .amdhsa_next_free_sgpr 102
  .amdhsa_accum_offset 256
  .amdhsa_group_segment_fixed_size 0
  .amdhsa_kernarg_size 56
  .amdhsa_user_sgpr_count 2
  .amdhsa_user_sgpr_kernarg_segment_ptr 1
  .amdhsa_system_sgpr_workgroup_id_x 1
  .amdhsa_float_denorm_mode_32 3
.end_amdhsa_kernel
"""


def write(path, **kw):
    body, n = gen(**kw)
    with open(path, "w") as f:
        f.write(HEADER.format(k=KNAME))
        f.write("\n".join(x if x.endswith(":") and not x.startswith(";") else "    " + " ".join(x.split()) for x in body) + "\n")
        f.write(FOOTER.format(k=KNAME))
    return n


if __name__ == "__main__":
    write(sys.argv[1] if len(sys.argv) > 1 else "standalone__swiglu_ffn__prompt.s")
```
